```python
import torch

def _softmax(x, axis=-1):
    return torch.softmax(x, dim=axis)

def _gelu(x):
    return torch.nn.functional.gelu(x, approximate='tanh')

def _silu(x):
    return torch.nn.functional.silu(x)

def _sigmoid(x):
    return torch.sigmoid(x)

def _layernorm(x, axis=-1, eps=1e-05):
    m = x.mean(dim=axis, keepdim=True)
    v = x.var(dim=axis, keepdim=True, unbiased=False)
    return (x - m) / torch.sqrt(v + eps)

def _scatter_add(tgt, idx, src, axis=0):
    return tgt.clone().index_add_(axis, idx, src)

def _segment_sum(src, seg, n):
    out = torch.zeros((n,) + src.shape[1:], dtype=src.dtype)
    return out.index_add_(0, seg, src)

def _pad(x, pw):
    flat = tuple((v for pair in reversed(pw) for v in pair))
    return torch.nn.functional.pad(x, flat)
kernel_name = 'gated_mix__memory_aug_recurrent_mem_tr__memory_aug_recurrent_mem_tr__prompt'

def setup_inputs():

    _w = lambda a: (lambda t: t.to(torch.bfloat16) if t.is_floating_point() else t)(torch.as_tensor(a))

    def _A_setup():
        B, S, Dm = (1, 2048, 512)
        H, Dh = (32, 128)
        M, seg = (8, 32)
        seg = min(seg, S)
        S = S // seg * seg
        return {'x': _w((lambda *s: torch.randn(*s, dtype=torch.bfloat16) * 0.05)(B, S, Dm)), 'mem0': _w((lambda *s: torch.randn(*s, dtype=torch.bfloat16) * 0.4)(B, M, Dm)), 'Wq': _w((lambda *s: torch.randn(*s, dtype=torch.bfloat16) * 6.4)(Dm, H, Dh) * Dm ** (-0.5)), 'Wk': _w((lambda *s: torch.randn(*s, dtype=torch.bfloat16) * 6.4)(Dm, H, Dh) * Dm ** (-0.5)), 'Wv': _w((lambda *s: torch.randn(*s, dtype=torch.bfloat16) * 0.4)(Dm, H, Dh) * Dm ** (-0.5)), 'Wo': _w((lambda *s: torch.randn(*s, dtype=torch.bfloat16) * 0.4)(H, Dh, Dm) * (H * Dh) ** (-0.5)), 'seg_len': seg}
    _A_in = _A_setup()

    def _B_setup():
        B, S, Dm = (1, 2048, 512)
        H, Dh = (32, 128)
        M, seg = (8, 32)
        seg = min(seg, S)
        S = S // seg * seg
        return {'x': _w((lambda *s: torch.randn(*s, dtype=torch.bfloat16) * 0.05)(B, S, Dm)), 'mem0': _w((lambda *s: torch.randn(*s, dtype=torch.bfloat16) * 0.4)(B, M, Dm)), 'Wq': _w((lambda *s: torch.randn(*s, dtype=torch.bfloat16) * 6.4)(Dm, H, Dh) * Dm ** (-0.5)), 'Wk': _w((lambda *s: torch.randn(*s, dtype=torch.bfloat16) * 6.4)(Dm, H, Dh) * Dm ** (-0.5)), 'Wv': _w((lambda *s: torch.randn(*s, dtype=torch.bfloat16) * 0.4)(Dm, H, Dh) * Dm ** (-0.5)), 'Wo': _w((lambda *s: torch.randn(*s, dtype=torch.bfloat16) * 0.4)(H, Dh, Dm) * (H * Dh) ** (-0.5)), 'seg_len': seg}
    _B_in = _B_setup()
    return {'A_x': _A_in['x'], 'A_mem0': _A_in['mem0'], 'A_Wq': _A_in['Wq'], 'A_Wk': _A_in['Wk'], 'A_Wv': _A_in['Wv'], 'A_Wo': _A_in['Wo'], 'A_seg_len': _A_in['seg_len'], 'B_x': _B_in['x'], 'B_mem0': _B_in['mem0'], 'B_Wq': _B_in['Wq'], 'B_Wk': _B_in['Wk'], 'B_Wv': _B_in['Wv'], 'B_Wo': _B_in['Wo'], 'B_seg_len': _B_in['seg_len'], 'gate_w': _w((lambda *s: torch.randn(*s, dtype=torch.bfloat16) * 0.05)(512) * 16.0)}

def reference(A_x, A_mem0, A_Wq, A_Wk, A_Wv, A_Wo, A_seg_len, B_x, B_mem0, B_Wq, B_Wk, B_Wv, B_Wo, B_seg_len, gate_w):

    def _A_ref(x, mem0, Wq, Wk, Wv, Wo, seg_len):
        B, S, Dm = x.shape
        H, Dh = (Wq.shape[1], Wq.shape[2])
        M = mem0.shape[1]
        scale = Dh ** (-0.5)
        n_seg = S // seg_len
        L = M + seg_len
        idx = torch.arange(L)
        mask = (idx[:, None] < M) | (idx[:, None] >= idx[None, :])
        mem = mem0
        outs = []
        for s in range(n_seg):
            xs = x[:, s * seg_len:(s + 1) * seg_len, :].clone()
            h = torch.concatenate([mem, xs], axis=1)
            q = torch.einsum('btd,dhe->bhte', h, Wq)
            k = torch.einsum('btd,dhe->bhte', h, Wk)
            v = torch.einsum('btd,dhe->bhte', h, Wv)
            scores = torch.einsum('bhqe,bhke->bhqk', q, k) * scale
            scores = torch.where(mask[None, None], scores, -1000000000.0)
            p = _softmax(scores, axis=-1)
            o = torch.einsum('bhqk,bhke->bhqe', p, v)
            o = torch.einsum('bhte,hed->btd', o, Wo)
            mem = o[:, :M, :].clone()
            outs.append(o[:, M:, :])
        return torch.concatenate(outs, axis=1)

    def _B_ref(x, mem0, Wq, Wk, Wv, Wo, seg_len):
        B, S, Dm = x.shape
        H, Dh = (Wq.shape[1], Wq.shape[2])
        M = mem0.shape[1]
        scale = Dh ** (-0.5)
        n_seg = S // seg_len
        L = M + seg_len
        idx = torch.arange(L)
        mask = (idx[:, None] < M) | (idx[:, None] >= idx[None, :])
        mem = mem0
        outs = []
        for s in range(n_seg):
            xs = x[:, s * seg_len:(s + 1) * seg_len, :].clone()
            h = torch.concatenate([mem, xs], axis=1)
            q = torch.einsum('btd,dhe->bhte', h, Wq)
            k = torch.einsum('btd,dhe->bhte', h, Wk)
            v = torch.einsum('btd,dhe->bhte', h, Wv)
            scores = torch.einsum('bhqe,bhke->bhqk', q, k) * scale
            scores = torch.where(mask[None, None], scores, -1000000000.0)
            p = _softmax(scores, axis=-1)
            o = torch.einsum('bhqk,bhke->bhqe', p, v)
            o = torch.einsum('bhte,hed->btd', o, Wo)
            mem = o[:, :M, :].clone()
            outs.append(o[:, M:, :])
        return torch.concatenate(outs, axis=1)
    x = A_x
    g = _sigmoid((x * gate_w).sum(-1, keepdims=True))
    a = _A_ref(x, A_mem0, A_Wq, A_Wk, A_Wv, A_Wo, A_seg_len)
    b = _B_ref(x, B_mem0, B_Wq, B_Wk, B_Wv, B_Wo, B_seg_len)
    return g * a + (1 - g) * b
```

```python
class Asm:
    def __init__(self):
        self.lines = []
        self.uid = 0
    def __call__(self, s=''):
        for l in s.split('\n'):
            l = l.strip()
            if l == '':
                continue
            if l.endswith(':') or l.startswith('.') or l.startswith(';'):
                self.lines.append(l)
            else:
                self.lines.append('    ' + l)
    def c(self, s):
        self.lines.append('    ; ' + s)
    def label(self, base):
        self.uid += 1
        return f'L_{base}_{self.uid}'
    def text(self):
        return '\n'.join(self.lines) + '\n'

def v(a, n=1):
    return f'v{a}' if n == 1 else f'v[{a}:{a+n-1}]'
def a_(a, n=1):
    return f'a{a}' if n == 1 else f'a[{a}:{a+n-1}]'
def s(a, n=1):
    return f's{a}' if n == 1 else f's[{a}:{a+n-1}]'
```

```python
from asmlib import *
import struct

WS_KV   = 0x00000000
WS_KM   = 0x04000000
WS_PR   = 0x06000000
WS_MR   = 0x06F00000
WS_FLK  = 0x07000000
WS_FLM  = 0x07001000
WS_DUMMY= 0x06F80000
WS_DBGM = 0x06200000

L_MEM  = 0
L_Q    = 8192
L_K    = 10240
L_ZERO = 14336
L_WOA  = 16384
L_WOB  = 57344
L_VL   = 98304
L_KV1  = 131072
L_KV0  = 147456
L_STG  = 16384
TL = [0, 1, 2, 6, 7]

vVL  = 0
vIDX = 1
vM = [2, 3, 4, 5]
vQw, vKw, vQr, vKr = 6, 7, 8, 9
vKX, vVX = 10, 11
vOw, vL16 = 12, 13
vWoA, vWoB = 14, 15
vPst, vRed, vMst = 16, 17, 18
vFlag = 19
ONE = 20
vPub = 24
vT0, vT1 = 26, 27
mA = [32 + 4 * c for c in range(8)]
accQ, accK, accV = 64, 72, 80
qf = [64, 68, 88, 92]
kf = [72, 76, 96, 100]
Sx = [104, 108]
Sm = 28
WRES = 112
WV = 128
def wv_home(ft, c): return WV + (ft * 8 + c) * 8
WO_HOME = {(3, 0): WRES, (3, 1): WRES + 8, (4, 0): wv_home(0, 2), (4, 1): wv_home(0, 3), (5, 0): wv_home(1, 2), (5, 1): wv_home(1, 3)}
VSTREAM = [(0, 2), (1, 2), (0, 3), (1, 3)]
VSBUF = [88, 96, 104, 32]
sWS = 4; sDBG = 6
sW, sH, sB = 8, 9, 10
sStep = 11
sTO = 12
sA = 14; sA2 = 16
sP0 = [18, 22, 26]
sP1 = [20, 24, 28]
sPr = [30, 32, 34]
sM = [36, 38, 40]
sKV = 42
sKMk = 44
sKMv = 46
sC = 48
sEX = 50
sKVL = 53
sTag = 52
sT = 54
sFLK = 60
sFLM = 62
sFE = 64
sNeed = 66

SM_SCALE_LOG2E = (128 ** -0.5) * 1.4426950408889634
def f32bits(x): return struct.unpack('<I', struct.pack('<f', x))[0]

def add64(A, dst, src, off):
    A(f's_add_u32 s{dst}, s{src}, {off}')
    A(f's_addc_u32 s{dst+1}, s{src+1}, 0')

def chain_startup_weights(A, w, K):
    vG = [40, 41, 42, 43]; vR = [44, 45]; vX = 46; vY = 47; vZ = 48
    tmpV = (w * 8192) if w < 2 else (L_KV0 + (w - 2) * 8192)
    def dma_qkv_chunk(mat, c):
        add64(A, sA, K[mat], c * 64 * 8192)
        for ii in range(4):
            A(f's_mov_b32 m0, {L_STG + c * 16384 + w * 4096 + ii * 1024}')
            A('s_nop 0')
            A(f'global_load_lds_dwordx4 v{vG[ii]}, s[{sA}:{sA+1}] nt')
    def dma_wo_chunk(c):
        for ii in range(4):
            e = 16 * c + 4 * w + ii
            x = (((e >> 5) & 1) << 2) | (((e >> 4) & 1) << 1) | (e & 1)
            add64(A, sA, K['Wo'], e * 1024)
            A(f'v_xor_b32 v{vZ}, {32 * x}, v{vL16}')
            A(f's_mov_b32 m0, {L_STG + c * 16384 + (4 * w + ii) * 1024}')
            A('s_nop 0')
            A(f'global_load_lds_dwordx4 v{vZ}, s[{sA}:{sA+1}] nt')
    A(f'v_lshrrev_b32 v{vX}, 4, v0')
    A(f'v_and_b32 v{vY}, 1, v{vX}')
    A(f'v_or_b32 v{vY}, {((w >> 1) << 2) | ((w & 1) << 1)}, v{vY}')
    A(f'v_lshlrev_b32 v{vY}, 1, v{vY}')
    A(f'v_and_b32 v{vZ}, 15, v0')
    A(f'v_xor_b32 v{vZ}, v{vZ}, v{vY}')
    A(f'v_lshlrev_b32 v{vZ}, 4, v{vZ}')
    A(f'v_add_u32 v{vX}, {16 * w}, v{vX}')
    A(f'v_lshlrev_b32 v{vX}, 13, v{vX}')
    A(f'v_add_u32 v{vG[0]}, v{vX}, v{vZ}')
    for ii in range(1, 4):
        A(f'v_add_u32 v{vG[ii]}, {ii * 32768}, v{vG[0]}')
    A(f'v_bfe_u32 v{vX}, v0, 3, 1')
    A(f'v_bfe_u32 v{vY}, v0, 4, 1')
    A(f'v_bfe_u32 v{vZ}, v0, 2, 1')
    A(f'v_lshlrev_b32 v49, 2, v{vX}')
    A(f'v_lshl_or_b32 v49, v{vY}, 1, v49')
    A(f'v_or_b32 v49, v49, v{vZ}')
    A(f'v_lshlrev_b32 v50, 5, v{vX}')
    A(f'v_lshl_or_b32 v50, v{vY}, 4, v50')
    A(f'v_or_b32 v50, v50, v{vZ}')
    A(f'v_bfe_u32 v51, v0, 5, 1')
    A(f'v_lshl_or_b32 v50, v51, 2, v50')
    A(f'v_and_b32 v51, 3, v0')
    A(f'v_lshlrev_b32 v51, 3, v51')
    A(f'v_xor_b32 v52, {2 * w}, v49')
    A(f'v_lshlrev_b32 v52, 5, v52')
    A(f'v_lshl_or_b32 v52, v50, 8, v52')
    A(f'v_add_u32 v52, v52, v51')
    A(f'v_lshlrev_b32 v53, 5, v49')
    A(f'v_lshl_or_b32 v53, v50, 10, v53')
    A(f'v_add_u32 v53, v53, v51')
    A(f'v_add_u32 v53, {L_STG + 256 * w}, v53')
    A(f'v_add_u32 v55, {tmpV}, v{vL16}')
    for c in range(8):
        dma_qkv_chunk('Wq', c)
    nxt = {'Wq': 'Wk', 'Wk': 'Wv', 'Wv': 'Wo'}
    for mat in ['Wq', 'Wk', 'Wv']:
        for c in range(8):
            A('s_waitcnt vmcnt(28)')
            A('s_barrier')
            cc = (c - 2 * w) & 7
            A(f'v_add_u32 v{vR[0]}, {L_STG + c * 16384}, v52')
            A(f'v_xor_b32 v{vR[1]}, 32, v{vR[0]}')
            streamed = (mat == 'Wv' and cc in (2, 3))
            for ft in range(2):
                for z in range(4):
                    off = 2048 * (z >> 1) + 512 * (z & 1)
                    r = (ft * 8 + cc) * 8 + 2 * z
                    if mat == 'Wq': dst = a_(r, 2)
                    elif mat == 'Wk': dst = a_(128 + r, 2)
                    elif streamed: dst = v(56 + 8 * ft + 2 * z, 2)
                    else: dst = v(WV + r, 2)
                    A(f'ds_read_b64_tr_b16 {dst}, v{vR[ft]} offset:{off}')
            A('s_waitcnt lgkmcnt(0)')
            if streamed:
                for ft in range(2):
                    i = VSTREAM.index((ft, cc))
                    A(f'ds_write_b128 v55, {v(56 + 8*ft, 4)} offset:{i * 2048}')
                    A(f'ds_write_b128 v55, {v(60 + 8*ft, 4)} offset:{i * 2048 + 1024}')
                A('s_waitcnt lgkmcnt(0)')
            A('s_barrier')
            if nxt[mat] == 'Wo': dma_wo_chunk(c)
            else: dma_qkv_chunk(nxt[mat], c)
    def wo_read(t, ks2, dst):
        A(f'v_xor_b32 v54, {32 * t}, v53')
        if ks2: A(f'v_add_u32 v54, 65536, v54')
        for z in range(4):
            A(f'ds_read_b64_tr_b16 {v(dst + 2 * z, 2)}, v54 offset:{8192 * (z >> 1) + 2048 * (z & 1)}')
    A('s_waitcnt vmcnt(0)')
    A('s_barrier')
    for ks2, base in [(0, vWoA), (1, vWoB)]:
        for t in (3, 4, 5): wo_read(t, ks2, WO_HOME[(t, ks2)])
        for i, t in enumerate(TL): wo_read(t, ks2, 56 + 8 * i)
        A('s_waitcnt lgkmcnt(0)')
        A('s_barrier')
        for i, t in enumerate(TL):
            A(f'ds_write_b128 v{base}, {v(56 + 8*i, 4)} offset:{i * 2048}')
            A(f'ds_write_b128 v{base}, {v(60 + 8*i, 4)} offset:{i * 2048 + 1024}')
        A('s_waitcnt lgkmcnt(0)')
    for i in range(8):
        A(f'ds_read_b128 {v(56 + 4*i, 4)}, v55 offset:{i * 1024}')
    A(f'v_add_u32 v54, {L_VL + w * 8192}, v{vL16}')
    A('s_waitcnt lgkmcnt(0)')
    for i in range(8):
        A(f'ds_write_b128 v54, {v(56 + 4*i, 4)} offset:{i * 1024}')
    A('s_waitcnt lgkmcnt(0)')

def chain_setup_persistent(A):
    A(f'v_lshlrev_b32 v{vL16}, 4, v0')
    A(f'v_bfe_u32 v{vT0}, v0, 1, 1')
    A(f'v_mul_u32_u24 v{vT0}, 0xAAAA, v{vT0}')
    A(f'v_add_u32 v{vIDX}, 0x4444, v{vT0}')
    for i in range(4):
        A(f's_add_u32 s{sT}, s{sW}, {i}')
        A(f's_and_b32 s{sT}, s{sT}, 3')
        A(f's_lshl_b32 s{sT}, s{sT}, 11')
        A(f'v_add_u32 v{vM[i]}, s{sT}, v{vL16}')
    A(f'v_and_b32 v{vT0}, 15, v0')
    A(f'v_lshrrev_b32 v{vT1}, 4, v0')
    A(f's_lshl_b32 s{sT}, s{sW}, 5')
    A(f'v_add_u32 v30, s{sT}, v{vT0}')
    A(f'v_lshlrev_b32 v31, 4, v30')
    A(f'v_lshl_add_u32 v31, v{vT1}, 2, v31')
    A(f'v_add_u32 v{vQw}, {L_Q}, v31')
    A(f'v_lshlrev_b32 v31, 5, v30')
    A(f'v_lshl_add_u32 v31, v{vT1}, 3, v31')
    A(f'v_add_u32 v{vKw}, {L_K}, v31')
    A(f'v_bfe_u32 v30, v0, 5, 1')
    A(f'v_lshlrev_b32 v30, 4, v30')
    A(f'v_bfe_u32 v31, v0, 4, 1')
    A(f'v_lshl_add_u32 v30, v31, 2, v30')
    A(f'v_bfe_u32 v31, v0, 2, 2')
    A(f'v_add_u32 v30, v30, v31')
    A(f'v_and_b32 v31, 1, v0')
    A(f'v_lshlrev_b32 v31, 3, v31')
    A(f'v_lshl_add_u32 v31, v30, 4, v31')
    A(f'v_add_u32 v{vQr}, {L_Q}, v31')
    A(f'v_and_b32 v31, 3, v0')
    A(f'v_lshlrev_b32 v31, 3, v31')
    A(f'v_lshl_add_u32 v31, v30, 5, v31')
    A(f'v_add_u32 v{vKr}, {L_K}, v31')
    A(f'v_add_u32 v{vKX}, {L_KV0}, v{vL16}')
    A(f's_lshl_b32 s{sT}, s{sW}, 11')
    A(f's_add_u32 s{sT}, s{sT}, {L_KV0 + 8192}')
    A(f'v_add_u32 v{vVX}, s{sT}, v{vL16}')
    A(f'v_lshlrev_b32 v30, 4, v{vT1}')
    A(f'v_bfe_u32 v31, v{vT0}, 1, 2')
    A(f'v_lshl_add_u32 v30, v31, 2, v30')
    A(f'v_and_b32 v31, 1, v{vT0}')
    A(f'v_add_u32 v30, v30, v31')
    A(f's_and_b32 s{sT}, s{sW}, 1')
    A(f's_lshl_b32 s{sT}, s{sT}, 1')
    A(f'v_add_u32 v30, s{sT}, v30')
    A(f'v_lshlrev_b32 v30, 4, v30')
    A(f'v_lshrrev_b32 v31, 3, v{vT0}')
    A(f'v_lshl_add_u32 v30, v31, 3, v30')
    A(f's_lshr_b32 s{sT}, s{sW}, 1')
    A(f's_lshl_b32 s{sT}, s{sT}, 10')
    A(f'v_add_u32 v{vOw}, s{sT}, v30')
    A(f's_mul_i32 s{sT}, s{sW}, {5 * 2048}')
    A(f's_add_u32 s{sT+1}, s{sT}, {L_WOA}')
    A(f'v_add_u32 v{vWoA}, s{sT+1}, v{vL16}')
    A(f's_add_u32 s{sT+1}, s{sT}, {L_WOB}')
    A(f'v_add_u32 v{vWoB}, s{sT+1}, v{vL16}')
    A(f'v_lshrrev_b32 v30, 2, v{vT0}')
    A(f's_lshl_b32 s{sT}, s{sW}, 3')
    A(f'v_add_u32 v30, s{sT}, v30')
    A(f'v_lshlrev_b32 v30, 13, v30')
    A(f'v_and_b32 v31, 3, v{vT0}')
    A(f'v_lshl_add_u32 v31, v{vT1}, 2, v31')
    A(f'v_lshl_add_u32 v30, v31, 4, v30')
    A(f's_lshl_b32 s{sT}, s{sH}, 8')
    A(f'v_add_u32 v{vPst}, s{sT}, v30')
    A(f'v_and_b32 v30, 1, v{vT0}')
    A(f'v_lshl_add_u32 v30, v{vT1}, 1, v30')
    A(f'v_lshlrev_b32 v30, 8, v30')
    A(f'v_lshrrev_b32 v31, 1, v{vT0}')
    A(f'v_lshl_add_u32 v30, v31, 4, v30')
    A(f's_lshl_b32 s{sT}, s{sH}, 13')
    A(f's_and_b32 s{sT+1}, s{sW}, 1')
    A(f's_lshl_b32 s{sT+1}, s{sT+1}, 7')
    A(f's_add_u32 s{sT}, s{sT}, s{sT+1}')
    A(f'v_add_u32 v{vRed}, s{sT}, v30')
    A(f'v_and_b32 v30, 1, v{vT0}')
    A(f'v_bfe_u32 v31, v{vT0}, 2, 1')
    A(f'v_lshl_add_u32 v30, v31, 1, v30')
    A(f'v_lshrrev_b32 v31, 1, v{vT1}')
    A(f'v_lshl_add_u32 v30, v31, 2, v30')
    A(f'v_lshlrev_b32 v30, 4, v30')
    A(f'v_bfe_u32 v31, v{vT0}, 1, 1')
    A(f'v_lshl_add_u32 v30, v31, 3, v30')
    A(f'v_and_b32 v31, 1, v{vT1}')
    A(f'v_lshl_add_u32 v30, v31, 2, v30')
    A(f's_lshl_b32 s{sT}, s{sH}, 8')
    A(f's_and_b32 s{sT+1}, s{sW}, 1')
    A(f's_lshl_b32 s{sT+1}, s{sT+1}, 7')
    A(f's_add_u32 s{sT}, s{sT}, s{sT+1}')
    A(f'v_add_u32 v{vMst}, s{sT}, v30')
    for r in range(4): A(f'v_mov_b32 v{ONE + r}, 0x3f803f80')
    A(f's_mov_b32 s{sC}, {hex(f32bits(SM_SCALE_LOG2E))}')
    A(f's_mov_b32 s{sEX}, 0x00ff00ff')
    A(f's_mov_b32 s{sEX+1}, 0x00ff00ff')

def smf(A, acc, a, b):
    A(f'v_smfmac_f32_16x16x64_bf16 {v(acc,4)}, {v(a,4)}, {b}, v{vIDX}')
def Qm(A, ft, c): smf(A, accQ + 4 * ft, mA[c], a_((ft * 8 + c) * 8, 8))
def Km(A, ft, c): smf(A, accK + 4 * ft, mA[c], a_(128 + (ft * 8 + c) * 8, 8))
def Vm(A, ft, c):
    b = VSBUF[VSTREAM.index((ft, c))] if (ft, c) in VSTREAM else wv_home(ft, c)
    smf(A, accV + 4 * ft, mA[c], v(b, 8))

def initial_bases(A):
    A(f's_lshl_b32 s{sT+1}, s{sB}, 20')
    A(f's_add_u32 s{sT+1}, s{sT+1}, {WS_PR}')
    add64(A, sP0[0], sWS, f's{sT+1}')
    for k in range(3):
        if k: add64(A, sP0[k], sP0[0], k * 262144)
        add64(A, sP1[k], sP0[k], 32768)
        add64(A, sPr[k], sP0[k], 4096)
    A(f's_lshl_b32 s{sT+1}, s{sB}, 15')
    A(f's_add_u32 s{sT+1}, s{sT+1}, {WS_MR}')
    add64(A, sM[0], sWS, f's{sT+1}')
    add64(A, sM[1], sM[0], 8192)
    add64(A, sM[2], sM[0], 16384)
    A(f's_lshl_b32 s{sT}, s{sB}, 11')
    A(f's_add_u32 s{sT}, s{sT}, s{sH}')
    A(f's_lshl_b32 s{sT+1}, s{sT}, 14')
    A(f's_lshl_b32 s{sT+2}, s{sW}, 12')
    A(f's_add_u32 s{sT+1}, s{sT+1}, s{sT+2}')
    add64(A, sKV, sWS, f's{sT+1}')
    A(f's_lshl_b32 s{sT}, s{sT}, 13')
    A(f's_add_u32 s{sT}, s{sT}, {WS_KM}')
    A(f's_lshl_b32 s{sT+1}, s{sW}, 10')
    A(f's_add_u32 s{sT}, s{sT}, s{sT+1}')
    add64(A, sKMk, sWS, f's{sT}')

def timeout_check(A, lfail):
    A(f's_sub_u32 s{sTO}, s{sTO}, 1')
    A(f's_cbranch_scc1 {lfail}')

NST = 10
def stamp(A, opt, i, hop=None):
    if opt.get('hopst'):
        if hop is None: return
        i = hop
    elif i is None: return
    if opt.get('stamps'): A(f"{'s_memrealtime' if opt.get('rt') else 's_memtime'} s[{78 + 2*i}:{79 + 2*i}]")
def stamp_accum(A, opt):
    if opt.get('stamps'):
        A('s_waitcnt lgkmcnt(0)')
        if opt.get('rawstep') is not None:
            l = A.label('noraw')
            A(f's_cmp_eq_u32 s{sStep}, {opt["rawstep"] + 1}')
            A(f's_cbranch_scc0 {l}')
            A(f's_lshl_b32 s{sT}, s{sB}, 5'); A(f's_add_u32 s{sT}, s{sT}, s{sH}')
            A(f's_lshl_b32 s{sT}, s{sT}, 2'); A(f's_add_u32 s{sT}, s{sT}, s{sW}')
            A(f's_lshl_b32 s{sT}, s{sT}, 6'); A(f's_add_u32 s{sT}, s{sT}, 0x06600000')
            A(f'v_mov_b32 v{vT0}, s{sT}')
            for i in range(NST):
                A(f'v_mov_b32 v{vT1}, s{78 + 2*i}')
                A(f'global_store_dword v{vT0}, v{vT1}, s[{sWS}:{sWS+1}] offset:{4*i}')
            A(f'{l}:')
        for i in range(NST - 1):
            A(f's_sub_u32 s{sT}, s{78 + 2*(i+1)}, s{78 + 2*i}')
            A(f's_add_u32 s{60 + i}, s{60 + i}, s{sT}')

class Lds:
    def __init__(self, A): self.A = A; self.q = []; self.done = -1
    def op(self, tag, ins): self.A(ins); self.q.append(tag)
    def mk(self, tag, ins): return lambda: self.op(tag, ins)
    def wait_ins(self, tags):
        last = max(len(self.q) - 1 - self.q[::-1].index(t) for t in tags)
        if last <= self.done: return None
        self.done = last
        n = len(self.q) - 1 - last
        assert n <= 15, n
        return f's_waitcnt lgkmcnt({n})'
    def need(self, *tags):
        w = self.wait_ins(tags)
        if w: self.A(w)
    def mkneed(self, *tags): return lambda: self.need(*tags)
    def drain(self): self.A('s_waitcnt lgkmcnt(0)'); self.done = len(self.q) - 1

def chain_role(A, opt):
    integ = opt.get('integ', 0)
    assert not (integ and opt.get('stamps'))
    K = {'Wq': 60, 'Wk': 62, 'Wv': 64, 'Wo': 66, 'mem0': 68}
    A('L_chain:')
    A(f's_mul_i32 s{sT}, s{sB}, 56')
    A(f's_add_u32 s{sA}, s0, s{sT}')
    A(f's_addc_u32 s{sA+1}, s1, 0')
    A(f's_load_dwordx2 s[{K["mem0"]}:{K["mem0"]+1}], s[{sA}:{sA+1}], 8')
    A(f's_load_dwordx4 s[60:63], s[{sA}:{sA+1}], 16')
    A(f's_load_dwordx4 s[64:67], s[{sA}:{sA+1}], 32')
    A('s_waitcnt lgkmcnt(0)')
    A(f's_lshl_b32 s{sT}, s{sH}, 8')
    for m in ['Wq', 'Wk', 'Wv']: add64(A, K[m], K[m], f's{sT}')
    A(f's_lshl_b32 s{sT}, s{sH}, 17')
    add64(A, K['Wo'], K['Wo'], f's{sT}')
    chain_setup_persistent(A)
    A(f's_mov_b32 s{sStep}, 0')
    A(f's_mov_b32 s{sTag}, 0')
    initial_bases(A)
    A.c('poison both partial slots and all four mem slots')
    for r in range(32, 36): A(f'v_mov_b32 v{r}, -1')
    for k in range(3):
        A(f'global_store_dwordx4 v{vPst}, v[32:35], s[{sP0[k]}:{sP0[k]+1}]')
        A(f'global_store_dwordx4 v{vPst}, v[32:35], s[{sP1[k]}:{sP1[k]+1}]')
    A(f's_mov_b64 exec, s[{sEX}:{sEX+1}]')
    for k in range(3):
        A(f'global_store_dword v{vMst}, v32, s[{sM[k]}:{sM[k]+1}]')
    A('s_mov_b64 exec, -1')
    if integ:
        A(f's_lshl_b32 s{sT}, s{sB}, 5'); A(f's_add_u32 s{sT}, s{sT}, s{sH}'); A(f's_lshl_b32 s{sT}, s{sT}, 6')
        A(f's_add_u32 s{sT}, s{sT}, {WS_FLM}')
        A(f'v_mov_b32 v30, s{sT}'); A('v_mov_b32 v31, 0')
        A(f'global_store_dword v30, v31, s[{sWS}:{sWS+1}] sc1')
    A('s_waitcnt vmcnt(0)')
    A('s_barrier')
    A(f's_cmp_lg_u32 s{sW}, 0')
    l = A.label('noann'); A(f's_cbranch_scc1 {l}')
    A(f's_lshl_b32 s{sT}, s{sB}, 2')
    A(f's_add_u32 s{sT}, s{sT}, 32')
    A(f'v_mov_b32 v30, s{sT}')
    A('v_mov_b32 v31, 1')
    A('s_mov_b64 exec, 1')
    A(f'global_atomic_add v30, v31, s[{sDBG}:{sDBG+1}] sc1')
    A('s_mov_b64 exec, -1')
    A(f'{l}:')
    lend = A.label('wdone')
    labs = [A.label(f'w{w}') for w in range(4)]
    for w in range(1, 4):
        A(f's_cmp_eq_u32 s{sW}, {w}')
        A(f's_cbranch_scc1 {labs[w]}')
    for w in range(4):
        A(f'{labs[w]}:')
        chain_startup_weights(A, w, K)
        if w < 3: A(f's_branch {lend}')
    A(f'{lend}:')
    A('s_barrier')
    A('v_mov_b64 v[32:33], 0'); A('v_mov_b64 v[34:35], 0')
    A(f'ds_write_b128 v{vL16}, v[32:35] offset:{L_ZERO}')
    def kv_m0():
        A(f's_lshl_b32 s{sT}, s{sW}, 12')
        A(f's_add_u32 m0, s{sT}, s{sKVL}')
    def kv_dma(i): A(f'global_load_lds_dwordx4 v{vL16}, s[{sKV}:{sKV+1}] offset:{1024 * i} sc1')
    lw = A.label('clr')
    if integ:
        A(f'v_and_b32 v30, 7, v0'); A('v_lshlrev_b32 v30, 2, v30'); A('v_add_u32 v30, 32, v30')
    else:
        A(f's_lshl_b32 s{sT}, s{sB}, 2'); A(f's_add_u32 s{sT}, s{sT}, 32'); A(f'v_mov_b32 v30, s{sT}')
    A(f'{lw}:')
    A(f'global_load_dword v31, v30, s[{sDBG}:{sDBG+1}] sc1')
    A('s_waitcnt vmcnt(0)')
    A('v_cmp_gt_u32 vcc, 32, v31')
    timeout_check(A, 'L_fail')
    A(f's_cbranch_vccnz {lw}')
    if integ:
        A(f's_lshl_b32 s{sT}, s{sB}, 5'); A(f's_add_u32 s{sT}, s{sT}, s{sH}')
        A(f's_lshl_b32 s{sT+1}, s{sT}, 4'); A(f's_add_u32 s{sT+1}, s{sT+1}, {WS_FLK}'); add64(A, sFLK, sWS, f's{sT+1}')
        A(f's_lshl_b32 s{sT+1}, s{sT}, 6'); A(f's_add_u32 s{sT+1}, s{sT+1}, {WS_FLM}'); add64(A, sFLM, sWS, f's{sT+1}')
        A(f's_cmp_eq_u32 s{sW}, 3'); A(f's_cselect_b32 s{sFE}, 1, 0'); A(f's_mov_b32 s{sFE+1}, 0')
        A(f's_mov_b32 s{sNeed}, 1')
        lw = A.label('p1first')
        A(f'{lw}:')
        A('s_mov_b64 exec, 1')
        A(f'global_load_dword v31, v{vL16}, s[{sFLK}:{sFLK+1}] sc1')
        A('s_waitcnt vmcnt(0)')
        A('v_cmp_gt_u32 vcc, 1, v31')
        A('s_mov_b64 exec, -1')
        timeout_check(A, 'L_fail')
        A(f's_cbranch_vccnz {lw}')
        A('s_mov_b64 exec, 1')
        A(f'global_load_dword v{vFlag}, v{vL16}, s[{sFLK}:{sFLK+1}] offset:4 sc1')
        A('s_mov_b64 exec, -1')
    A(f's_mov_b32 s{sKVL}, {L_KV0}')
    kv_m0(); A('s_nop 0')
    for i in range(4): kv_dma(i)
    add64(A, sKV, sKV, 32 * 16384)
    A(f's_mov_b32 s{sKVL}, {L_KV1}')
    A('v_bfe_u32 v30, v0, 2, 2')
    A('v_and_b32 v31, 1, v0')
    A('v_lshl_add_u32 v30, v30, 1, v31')
    A('v_lshlrev_b32 v30, 10, v30')
    A('v_bfe_u32 v31, v0, 1, 1')
    A('v_lshl_add_u32 v30, v31, 6, v30')
    A('v_lshrrev_b32 v31, 4, v0')
    A('v_lshl_add_u32 v30, v31, 3, v30')
    A(f's_lshl_b32 s{sT}, s{sW}, 8')
    A(f'v_add_u32 v30, s{sT}, v30')
    m0 = K['mem0']
    A(f'global_load_dwordx2 v[32:33], v30, s[{m0}:{m0+1}]')
    A(f'global_load_dwordx2 v[34:35], v30, s[{m0}:{m0+1}] offset:32')
    A(f'global_load_dwordx2 v[36:37], v30, s[{m0}:{m0+1}] offset:128')
    A(f'global_load_dwordx2 v[38:39], v30, s[{m0}:{m0+1}] offset:160')
    A(f's_lshl_b32 s{sT}, s{sW}, 13')
    A(f's_add_u32 s{sT}, s{sT}, {L_VL}')
    A(f'v_add_u32 v{vVL}, s{sT}, v{vL16}')

    def seq(mf, fill):
        for i, m in enumerate(mf):
            m()
            ins = fill.get(i, [])
            for x in ins:
                if callable(x): x()
                else: A(x)
    def put(fill, slot, *ins): fill.setdefault(slot, []).extend(ins)
    Q = lambda ft, c: (lambda: Qm(A, ft, c))
    Kx = lambda ft, c: (lambda: Km(A, ft, c))
    V = lambda ft, c: (lambda: Vm(A, ft, c))
    def post_ops(acc, ft, dst):
        b = acc + 4 * ft
        return [f'v_add_f32 v{b}, v{b}, v{b+2}', f'v_add_f32 v{b+1}, v{b+1}, v{b+3}', f'v_cvt_pk_bf16_f32 v{dst}, v{b}, v{b+1}']
    for r in range(accQ, accQ + 24, 2): A(f'v_mov_b64 {v(r,2)}, 0')
    A('s_waitcnt vmcnt(0)')
    if opt.get('timing'):
        A('s_memtime s[70:71]'); A('s_memrealtime s[74:75]'); A('s_waitcnt lgkmcnt(0)')
    if opt.get('stamps'):
        for i in range(NST): A(f's_mov_b32 s{60 + i}, 0')
        A('s_mov_b32 s98, 0'); A('s_mov_b32 s99, 0')
    def delay(n):
        while n > 0:
            k = min(n, 4); A(f's_nop {4 * k - 1}'); n -= k
    KP = 96
    vm = [76, 78]
    slow = []

    def front(last, L, u=0):
        L.op('mw0', f'ds_write_b128 v{vM[0]}, {v(mA[0],4)}')
        L.op('mw1', f'ds_write_b128 v{vM[0]}, {v(mA[1],4)} offset:1024')
        if last: seq([Kx(0,0), Kx(1,0), Kx(0,1), Kx(1,1), V(0,0)], {})
        else: seq([Q(0,0), Q(1,0), Q(0,1), Q(1,1), Kx(0,0)], {})
        L.drain()
        A('s_barrier')
        stamp(A, opt, 1)
        if not last: cut(1)
        rd = []
        for i in range(1, 4):
            rd.append(L.mk(('m', 2*i), f'ds_read_b128 {v(mA[2*i],4)}, v{vM[i]}'))
            rd.append(L.mk(('m', 2*i+1), f'ds_read_b128 {v(mA[2*i+1],4)}, v{vM[i]} offset:1024'))
        vs = []
        for i in range(4):
            vs.append(L.mk(('vs', i, 0), f'ds_read_b128 {v(VSBUF[i],4)}, v{vVL} offset:{i * 2048}'))
            vs.append(L.mk(('vs', i, 1), f'ds_read_b128 {v(VSBUF[i]+4,4)}, v{vVL} offset:{i * 2048 + 1024}'))
        order = [(0,2), (1,2), (0,3), (1,3)] + [(ft, c) for c in range(4, 8) for ft in range(2)]
        rd[0](); rd[1]()
        if last:
            for x in rd[2:]: x()
            seq([V(1,0), V(0,1), V(1,1)], {})
            for x in vs: x()
            L.need(('m', 7))
            seq([Kx(ft, c) for c in range(2, 8) for ft in range(2)], {})
            L.drain()
            p0 = post_ops(accK, 0, vPub); p1 = post_ops(accK, 1, vPub + 1)
            seq([V(ft, c) for ft, c in order], {1: p0, 2: p1})
            return
        seq([Kx(1,0), Kx(0,1), Kx(1,1), V(0,0), V(1,0), V(0,1), V(1,1)], {0: [rd[2]], 1: [rd[3]], 2: [rd[4]], 3: [rd[5]]})
        f = {}
        L.need(('m', 2))
        for c in range(3, 8): put(f, 2 * (c - 2) - 1, L.mkneed(('m', c)))
        put(f, 0, kv_m0)
        if integ:
            def p1_check():
                lslow = A.label('p1slow'); lback = A.label('p1ok')
                A(f'v_readfirstlane_b32 s{sT+1}, v{vFlag}')
                if u == 2: A(f's_add_u32 s{sT+2}, s{sNeed}, 1')
                else: A(f's_mov_b32 s{sT+2}, s{sNeed}')
                A(f's_cmp_lt_u32 s{sT+1}, s{sT+2}')
                A(f's_cbranch_scc1 {lslow}')
                A(f'{lback}:')
                slow.append((lslow, lback, (u + 1) % 3))
            put(f, 1, p1_check)
            put(f, 9, 's_mov_b64 exec, 1', f'global_load_dword v{vFlag}, v{vL16}, s[{sFLK}:{sFLK+1}] offset:{4 * ((u + 2) % 3)} sc1', 's_mov_b64 exec, -1')
            put(f, 3, f'v_mov_b32 v{vT0}, s{sStep}')
            put(f, 5, f's_mov_b64 exec, s[{sFE}:{sFE+1}]', f'global_store_dword v{vL16}, v{vT0}, s[{sFLM}:{sFLM+1}] sc1', 's_mov_b64 exec, -1')
        if not opt.get('nodma'):
            for i in range(4): put(f, 2 + 2 * i, (lambda i=i: kv_dma(i)))
        put(f, 10, f's_add_u32 s{sKV}, s{sKV}, {32 * 16384}', f's_addc_u32 s{sKV+1}, s{sKV+1}, 0')
        put(f, 11, f's_xor_b32 s{sKVL}, s{sKVL}, {L_KV0 ^ L_KV1}')
        seq([Q(ft, c) for c in range(2, 8) for ft in range(2)], f)
        f = {}
        qr = [L.mk(('q', ks, jj), f'ds_read_b64_tr_b16 {v(qf[ks] + 2*jj, 2)}, v{vQr} offset:{ks * 512 + jj * 128}') for ks in range(4) for jj in range(2)]
        p0 = post_ops(accQ, 0, vT0); p1 = post_ops(accQ, 1, vT1)
        put(f, 0, p0[0], p0[1]); put(f, 1, p0[2], L.mk('qw0', f'ds_write_b32 v{vQw}, v{vT0}'), p1[0])
        put(f, 2, p1[1], p1[2], L.mk('qw1', f'ds_write_b32 v{vQw}, v{vT1} offset:256'))
        put(f, 3, vs[0]); put(f, 4, vs[1]); put(f, 5, vs[2]); put(f, 6, vs[3])
        put(f, 7, L.mkneed('qw1'), 's_barrier')
        put(f, 8, qr[0], vs[4]); put(f, 9, qr[1], vs[5]); put(f, 10, qr[2], vs[6]); put(f, 11, qr[3], vs[7])
        seq([Kx(ft, c) for c in range(2, 8) for ft in range(2)], f)
        stamp(A, opt, 2)
        cut(2)
        f = {}
        kxr = lambda c: L.mk(('kx', c), f'ds_read_b128 {v(mA[c],4)}, v{vKX} offset:{1024 * c}')
        p0 = post_ops(accK, 0, vPub); p1 = post_ops(accK, 1, vPub + 1)
        L.need(('vs', 1, 1))
        put(f, 0, qr[4], p0[0]); put(f, 1, qr[5], p0[1], L.mkneed(('vs', 2, 1)))
        put(f, 2, p0[2], L.mk('kw0', f'ds_write_b32 v{vKw}, v{vPub}'), L.mkneed(('vs', 3, 1)))
        put(f, 3, qr[6], p1[0]); put(f, 4, qr[7], p1[1], kxr(2))
        put(f, 5, p1[2], L.mk('kw1', f'ds_write_b32 v{vKw}, v{vPub+1} offset:512'), kxr(3))
        put(f, 6, kxr(0), kxr(1)); put(f, 7, kxr(4)); put(f, 8, kxr(5)); put(f, 10, kxr(6)); put(f, 11, kxr(7))
        seq([V(ft, c) for ft, c in order], f)
        stamp(A, opt, 3)
        cut(3)

    def wo_fetch_ops(t, ks2, buf):
        base = vWoB if ks2 else vWoA
        i = TL.index(t)
        return [f'ds_read_b128 {v(buf,4)}, v{base} offset:{i*2048}', f'ds_read_b128 {v(buf+4,4)}, v{base} offset:{i*2048+1024}']

    class Cut(Exception): pass
    def cut(k):
        if opt.get('cut') == k:
            A('s_waitcnt lgkmcnt(0)')
            for r in range(64, 88, 2): A(f'v_mov_b64 {v(r,2)}, 0')
            A(f's_add_u32 s{sStep}, s{sStep}, 1')
            A('s_barrier')
            raise Cut()
    def step(u):
        try: step_(u)
        except Cut: pass
    def step_(u):
        stamp(A, opt, 0)
        if opt.get('dbgmem'):
            A(f's_lshl_b32 s{sT}, s{sB}, 6')
            A(f's_add_u32 s{sT}, s{sT}, s{sStep}')
            A(f's_lshl_b32 s{sT}, s{sT}, 13')
            A(f's_add_u32 s{sT}, s{sT}, {WS_DBGM}')
            add64(A, sA, sWS, f's{sT}')
            A(f'global_store_dwordx4 v{vM[0]}, {v(mA[0],4)}, s[{sA}:{sA+1}]')
            A(f'global_store_dwordx4 v{vM[0]}, {v(mA[1],4)}, s[{sA}:{sA+1}] offset:1024')
        L = Lds(A)
        front(False, L, u)
        L.need('kw1', ('q', 3, 1))
        A('s_barrier')
        kr = [L.mk(('k', ks, jj), f'ds_read_b64_tr_b16 {v(kf[ks] + 2*jj, 2)}, v{vKr} offset:{ks * 1024 + jj * 256}') for ks in range(4) for jj in range(2)]
        def Sxm(i):
            kt, ks = i >> 2, i & 3
            c = '0' if i in (2, 4) else v(Sx[kt], 4)
            return lambda: A(f'v_mfma_f32_16x16x32_bf16 {v(Sx[kt],4)}, {v(mA[i],4)}, {v(qf[ks],4)}, {c}')
        def Smm(ks):
            c = '0' if ks == 0 else v(Sm, 4)
            return lambda: A(f'v_mfma_f32_16x16x32_bf16 {v(Sm,4)}, {v(kf[ks],4)}, {v(qf[ks],4)}, {c}')
        f = {}
        xo = [2, 3, 0, 1, 4, 5, 6, 7]
        kr[0](); kr[1]()
        L.need(('kx', 3))
        for i in range(6): put(f, i, kr[2 + i])
        for i in range(1, 7): put(f, i, L.mkneed(('kx', xo[i + 1])))
        vxf = [40, 44]
        put(f, 6, L.mk('vx0', f'ds_read_b128 {v(vxf[0],4)}, v{vVX}'))
        put(f, 7, L.mk('vx1', f'ds_read_b128 {v(vxf[1],4)}, v{vVX} offset:1024'), L.mkneed(('k', 0, 1)))
        seq([Sxm(i) for i in xo], f)
        WB = [48, 56, 32, 40, 104, 88]
        wacc = [72, 76, 80, 96, 100, 104, 108, 88]
        f = {}
        pv0 = post_ops(accV, 0, vT0); pv1 = post_ops(accV, 1, vT1)
        put(f, 0, pv0[0], pv0[1], L.mkneed(('k', 1, 1)))
        put(f, 1, pv0[2], pv1[0], L.mkneed(('k', 2, 1)))
        put(f, 2, pv1[1], pv1[2], L.mkneed(('k', 3, 1)))
        if not opt.get('nopub'): put(f, 3, f'global_store_dwordx4 v{vL16}, {v(vPub,4)}, s[{sKMk}:{sKMk+1}] sc1')
        seq([Smm(ks) for ks in range(4)], f)
        A(f'v_mov_b32 v{vm[0]}, v{vT0}'); A(f'v_mov_b32 v{vm[0]+1}, 0')
        A(f'v_mov_b32 v{vm[1]}, v{vT1}'); A(f'v_mov_b32 v{vm[1]+1}, 0')
        w0 = wo_fetch_ops(0, 0, WB[0]); w1 = wo_fetch_ops(0, 1, WB[1]); w2 = wo_fetch_ops(1, 0, WB[2])
        A(w0[0]); A(w0[1])
        stamp(A, opt, 4)
        cut(4)
        sx = [Sx[0] + r for r in range(4)] + [Sx[1] + r for r in range(4)]
        A(f'v_max3_f32 v{vT0}, v{sx[0]}, v{sx[1]}, v{sx[2]}')
        A(f'v_max3_f32 v{vT1}, v{sx[3]}, v{sx[4]}, v{sx[5]}')
        A(f'v_max3_f32 v{vT0}, v{vT0}, v{sx[6]}, v{sx[7]}')
        A(f'v_max3_f32 v{vT0}, v{vT0}, v{Sm}, v{Sm+1}')
        A(f'v_max_f32 v{vT0}, v{vT0}, v{vT1}')
        A(f'v_mov_b32 v{vT1}, v{vT0}')
        A(w1[0]); A(w1[1])
        A(f'v_permlane16_swap_b32 v{vT0}, v{vT1}')
        A(f'v_max_f32 v{vT0}, v{vT0}, v{vT1}')
        A(f'v_mov_b32 v{vT1}, v{vT0}')
        A(w2[0]); A(w2[1])
        A(f'v_permlane32_swap_b32 v{vT0}, v{vT1}')
        A(f'v_max_f32 v{vT0}, v{vT0}, v{vT1}')
        A(f'v_mul_f32 v{vT0}, s{sC}, v{vT0}')
        if opt.get('pk', 1):
            for r in [Sx[0], Sx[0] + 2, Sx[1], Sx[1] + 2, Sm]:
                A(f'v_pk_fma_f32 {v(r,2)}, {v(r,2)}, s[{sC}:{sC+1}], {v(vT0,2)} op_sel_hi:[1,0,0] neg_lo:[0,0,1] neg_hi:[0,0,1]')
        else:
            for r in sx + [Sm, Sm + 1]: A(f'v_fma_f32 v{r}, v{r}, s{sC}, -v{vT0}')
        Px, Pm = 88, 92
        for r in sx + [Sm, Sm + 1]: A(f'v_exp_f32 v{r}, v{r}')
        A(f'v_mov_b32 v{Pm+1}, 0')
        A(f'v_cvt_pk_bf16_f32 v{Px}, v{sx[0]}, v{sx[1]}')
        A(f'v_cvt_pk_bf16_f32 v{Px+1}, v{sx[2]}, v{sx[3]}')
        A(f'v_cvt_pk_bf16_f32 v{Px+2}, v{sx[4]}, v{sx[5]}')
        A(f'v_cvt_pk_bf16_f32 v{Px+3}, v{sx[6]}, v{sx[7]}')
        A(f'v_cvt_pk_bf16_f32 v{Pm}, v{Sm}, v{Sm+1}')
        cut(5)
        oacc = [64, 68]; lacc = 72
        A('s_waitcnt lgkmcnt(6)')
        w3 = wo_fetch_ops(1, 1, WB[3]); w4 = wo_fetch_ops(2, 0, WB[4]); w5 = wo_fetch_ops(2, 1, WB[5])
        A(f'v_mfma_f32_16x16x32_bf16 {v(lacc,4)}, {v(ONE,4)}, {v(Px,4)}, 0')
        for ft in range(2):
            A(f'v_mfma_f32_16x16x32_bf16 {v(oacc[ft],4)}, {v(vxf[ft],4)}, {v(Px,4)}, 0')
            A(w4[ft])
        A(f'v_mfma_f32_16x16x16_bf16 {v(lacc,4)}, {v(ONE,2)}, {v(Pm,2)}, {v(lacc,4)}')
        for ft in range(2):
            A(f'v_mfma_f32_16x16x16_bf16 {v(oacc[ft],4)}, {v(vm[ft],2)}, {v(Pm,2)}, {v(oacc[ft],4)}')
            A(w3[ft])
        A('s_nop 1')
        A(f'v_rcp_f32 v{vT0}, v{lacc}')
        A(w5[0]); A(w5[1])
        A('s_nop 3')
        for r in range(4): A(f'v_cndmask_b32 v{64 + r}, v{68 + r}, v{64 + r}, s[{sEX}:{sEX+1}]')
        for r in range(0, 4, 2): A(f'v_pk_mul_f32 {v(64 + r, 2)}, {v(64 + r, 2)}, {v(vT0,2)} op_sel_hi:[1,0]')
        A('v_cvt_pk_bf16_f32 v64, v64, v65')
        A('v_cvt_pk_bf16_f32 v65, v66, v67')
        cut(6)
        A(f'ds_write_b64 v{vOw}, v[64:65]')
        A('s_waitcnt lgkmcnt(0)')
        A('s_barrier')
        stamp(A, opt, 5)
        cut(7)
        of = [64, 68]
        A(f'ds_read_b128 {v(of[0],4)}, v{vL16}')
        A(f'ds_read_b128 {v(of[1],4)}, v{vL16} offset:1024')
        for a0 in wacc[:5]:
            A(f'v_mov_b64 {v(a0,2)}, 0'); A(f'v_mov_b64 {v(a0+2,2)}, 0')
        outr = [84, 28]
        bufof = {(0,0): WB[0], (0,1): WB[1], (1,0): WB[2], (1,1): WB[3], (2,0): WB[4], (2,1): WB[5],
                 (6,0): WB[0], (6,1): WB[1], (7,0): WB[2], (7,1): WB[3]}
        bufof.update(WO_HOME)
        def wo_post_ops(t):
            acc = wacc[t]; o = outr[t >> 2] + (t & 3)
            r = [f'v_add_f32 v{acc}, v{acc}, v{acc+2}', f'v_add_f32 v{acc+1}, v{acc+1}, v{acc+3}', f'v_cvt_pk_bf16_f32 v{o}, v{acc}, v{acc+1}']
            return r
        refill = []
        for (t, ks2) in [(6,0), (6,1), (7,0), (7,1)]:
            for j, x in enumerate(wo_fetch_ops(t, ks2, bufof[(t, ks2)])): refill.append((x, ('w', t, ks2, j)))
        issued = [('o', 0), ('o', 1)]
        done = [-1]
        def need(tags):
            last = max(issued.index(t) for t in tags)
            if last > done[0]:
                A(f's_waitcnt lgkmcnt({len(issued) - 1 - last})')
                done[0] = last
        todo = []
        nref = 0
        for op in range(16):
            t, ks2 = op >> 1, op & 1
            acc = wacc[t]
            req = []
            if op < 2: req.append(('o', op))
            if t >= 6: req += [('w', t, ks2, 0), ('w', t, ks2, 1)]
            if t >= 5 and ks2 == 0: req.append(('z', t))
            if req: need(req)
            A(f'v_smfmac_f32_16x16x64_bf16 {v(acc,4)}, {v(of[ks2],4)}, {v(bufof[(t,ks2)],8)}, v{vIDX}')
            if nref < 8 and (nref >> 1) <= op:
                if 'ds' in opt.get('woskip', ''): A('s_nop 0')
                else: A(refill[nref][0])
                issued.append(refill[nref][1]); nref += 1
            if op in (5, 6, 7):
                A(f'ds_read_b128 {v(wacc[op],4)}, v{vL16} offset:{L_ZERO}'); issued.append(('z', op))
            if ks2 == 1 and t >= 1 and 'valu' not in opt.get('woskip', ''): todo += wo_post_ops(t - 1)
            for _ in range({3: 1, 4: 1}.get(op, 2) if op < 15 else 99):
                if todo: A(todo.pop(0))
            if op == 10:
                for x in todo: A(x)
                todo = []
                A(f'v_and_or_b32 v{outr[0]}, v{outr[0]}, -2, s{sTag}')
                if 'st' not in opt.get('woskip', ''): A(f'global_store_dwordx4 v{vPst}, {v(outr[0],4)}, s[{sP0[u]}:{sP0[u]+1}]')
        A('s_nop 5')
        for x in wo_post_ops(7): A(x)
        A(f'v_and_or_b32 v{outr[1]}, v{outr[1]}, -2, s{sTag}')
        if 'st' not in opt.get('woskip', ''): A(f'global_store_dwordx4 v{vPst}, {v(outr[1],4)}, s[{sP1[u]}:{sP1[u]+1}]')
        stamp(A, opt, 6, 0)
        cut(8)
        if opt.get('nohop'):
            for r in range(64, 88, 2): A(f'v_mov_b64 {v(r,2)}, 0')
            A(f's_add_u32 s{sStep}, s{sStep}, 1')
            A('s_barrier')
            for i in range(7, 10): stamp(A, opt, i)
            stamp_accum(A, opt)
            return
        SEL = 64; RA = [32, 36, 40, 44]; RACC = 68
        lnr = A.label('nored')
        for r in range(72, 88, 2): A(f'v_mov_b64 {v(r,2)}, 0')
        A(f's_cmp_ge_u32 s{sW}, 2'); A(f's_cbranch_scc1 {lnr}')
        def issue1():
            for i in range(4):
                b = sP0[u] if i < 2 else sPr[u]
                A(f'global_load_dwordx4 {v(RA[i],4)}, v{vRed}, s[{b}:{b+1}] offset:{2048 * (i & 1)} sc1')
        A(f'v_bfe_u32 v{vT0}, v{vL16}, 4, 3')
        A(f'v_lshrrev_b32 v{vT1}, 1, v{vT0}')
        A(f'v_and_b32 v{vT0}, 1, v{vT0}')
        A(f'v_lshlrev_b32 v{vT0}, 4, v{vT0}')
        A(f'v_mov_b32 v68, 0x3f80')
        A(f'v_lshlrev_b32 v{vT0}, v{vT0}, v68')
        for d in range(4):
            A(f'v_cmp_eq_u32 vcc, {d}, v{vT1}')
            A('s_nop 1')
            A(f'v_cndmask_b32 v{SEL + d}, 0, v{vT0}, vcc')
        delay(opt.get('d1', 0))
        issue1()
        stamp(A, opt, None, 1)
        lp = A.label('poll1'); lok = A.label('ok1')
        A(f'{lp}:')
        for rnd in range(2):
            for i in range(4):
                A(f's_waitcnt vmcnt({3 - i})')
                if rnd == 0 and i == 0: stamp(A, opt, None, 2)
                c = '0' if i == 0 else v(RACC, 4)
                A(f'v_mfma_f32_16x16x32_bf16 {v(RACC,4)}, {v(RA[i],4)}, {v(SEL,4)}, {c}')
                if i == 0: A(f'v_xor_b32 v{vT0}, s{sTag}, v{RA[0]}')
                else: A(f'v_bitop3_b32 v{vT0}, v{vT0}, v{RA[i]}, s{sTag} bitop3:0xf6')
            A(f'v_and_b32 v{vT0}, 1, v{vT0}')
            A(f'v_cmp_ne_u32 vcc, 0, v{vT0}')
            if rnd == 0: stamp(A, opt, None, 3)
            if opt.get('stamps'): A('s_add_u32 s98, s98, 1')
            A(f's_cbranch_vccz {lok}')
            issue1()
        timeout_check(A, 'L_fail')
        A(f's_branch {lp}')
        A(f'{lok}:')
        A('s_nop 5')
        A(f'v_add_f32 v{RACC}, v{RACC}, v{RACC+1}')
        A(f'v_add_f32 v{RACC+2}, v{RACC+2}, v{RACC+3}')
        A(f'v_cvt_pk_bf16_f32 v{vT0}, v{RACC}, v{RACC+2}')
        A(f'v_min_u32 v{vT0}, -2, v{vT0}')
        A(f's_mov_b64 exec, s[{sEX}:{sEX+1}]')
        mr = sM[(u + 1) % 3]; mp = sM[(u + 2) % 3]
        A(f'global_store_dword v{vMst}, v{vT0}, s[{mr}:{mr+1}]')
        A(f'v_mov_b32 v{vT1}, -1')
        A(f'global_store_dword v{vMst}, v{vT1}, s[{mp}:{mp+1}]')
        A('s_mov_b64 exec, -1')
        A(f'{lnr}:')
        stamp(A, opt, 7, 5)
        stamp(A, opt, 8, 6)
        def pollA():
            A(f'global_load_dwordx4 {v(mA[0],4)}, v{vM[0]}, s[{mr}:{mr+1}] sc1')
            A(f'global_load_dwordx4 {v(mA[1],4)}, v{vM[0]}, s[{mr}:{mr+1}] offset:1024 sc1')
        A('s_barrier')
        for r in range(64, 72, 2): A(f'v_mov_b64 {v(r,2)}, 0')
        delay(opt.get('d2', 0))
        pollA()
        A(f's_add_u32 s{sStep}, s{sStep}, 1')
        A(f'v_xor_b32 v{vKX}, {L_KV0 ^ L_KV1}, v{vKX}')
        A(f'v_xor_b32 v{vVX}, {L_KV0 ^ L_KV1}, v{vVX}')
        add64(A, sKMk, sKMk, 32 * 8192)
        stamp(A, opt, None, 7)
        lA = A.label('chkA'); lgo = A.label('go')
        A(f'{lA}:')
        for rnd in range(3):
            A('s_waitcnt vmcnt(0)')
            A(f'v_max3_u32 v{vT0}, v32, v34, v36')
            A(f'v_max_u32 v{vT0}, v{vT0}, v38')
            A(f'v_cmp_eq_u32 vcc, -1, v{vT0}')
            if rnd == 0: stamp(A, opt, None, 8)
            A(f's_cbranch_vccz {lgo}')
            if opt.get('stamps'): A('s_add_u32 s99, s99, 1')
            pollA()
        timeout_check(A, 'L_fail')
        A(f's_branch {lA}')
        A(f'{lgo}:')
        stamp(A, opt, 9, 9)
        stamp_accum(A, opt)

    A('.p2align 6')
    A('L_step:')
    for u in range(3): step(u)
    A(f's_xor_b32 s{sTag}, s{sTag}, 1')
    if integ: A(f's_add_u32 s{sNeed}, s{sNeed}, 1')
    A(f's_cmp_lt_u32 s{sStep}, 63')
    A('s_cbranch_scc1 L_step')
    if opt.get('dbgmem'):
        A(f's_lshl_b32 s{sT}, s{sB}, 6')
        A(f's_add_u32 s{sT}, s{sT}, s{sStep}')
        A(f's_lshl_b32 s{sT}, s{sT}, 13')
        A(f's_add_u32 s{sT}, s{sT}, {WS_DBGM}')
        add64(A, sA, sWS, f's{sT}')
        A(f'global_store_dwordx4 v{vM[0]}, {v(mA[0],4)}, s[{sA}:{sA+1}]')
        A(f'global_store_dwordx4 v{vM[0]}, {v(mA[1],4)}, s[{sA}:{sA+1}] offset:1024')
    front(True, Lds(A))
    A('s_nop 7')
    pv0 = post_ops(accV, 0, vT0); pv1 = post_ops(accV, 1, vT1)
    for x in pv0 + pv1: A(x)
    if integ:
        A(f'v_mov_b32 v30, s{sStep}')
        A(f's_mov_b64 exec, s[{sFE}:{sFE+1}]'); A(f'global_store_dword v{vL16}, v30, s[{sFLM}:{sFLM+1}] sc1'); A('s_mov_b64 exec, -1')
    A(f'global_store_dwordx4 v{vL16}, {v(vPub,4)}, s[{sKMk}:{sKMk+1}] sc1')
    A('s_waitcnt vmcnt(0)')
    if integ:
        A('s_barrier')
        A('v_mov_b32 v30, 64')
        A(f's_mov_b64 exec, s[{sFE}:{sFE+1}]'); A(f'global_store_dword v{vL16}, v30, s[{sFLM}:{sFLM+1}] sc1'); A('s_mov_b64 exec, -1')
        A('s_waitcnt vmcnt(0)')
    if opt.get('timing'):
        A('s_memtime s[72:73]'); A('s_memrealtime s[76:77]'); A('s_waitcnt lgkmcnt(0)')
        A('s_sub_u32 s72, s72, s70'); A('s_sub_u32 s76, s76, s74')
        A('v_mov_b32 v32, s72'); A('v_mov_b32 v33, s76')
        A(f'v_mov_b32 v34, s{sTO}'); A('v_mov_b32 v35, s74')
        A(f's_lshl_b32 s{sT}, s{sB}, 5'); A(f's_add_u32 s{sT}, s{sT}, s{sH}')
        A(f's_lshl_b32 s{sT}, s{sT}, 2'); A(f's_add_u32 s{sT}, s{sT}, s{sW}')
        A(f's_lshl_b32 s{sT}, s{sT}, 4'); A(f's_add_u32 s{sT}, s{sT}, 0x06400000')
        A(f'v_mov_b32 v30, s{sT}')
        A('s_mov_b64 exec, 1')
        A(f'global_store_dwordx4 v30, v[32:35], s[{sWS}:{sWS+1}]')
        if opt.get('stamps'):
            A(f's_lshl_b32 s{sT}, s{sT}, 2')
            A(f's_and_b32 s{sT}, s{sT}, 0xffff')
            A(f's_add_u32 s{sT}, s{sT}, 0x06500000')
            A(f'v_mov_b32 v30, s{sT}')
            A('s_mov_b32 s70, s98'); A('s_mov_b32 s71, s99')
            for q in range(3):
                for r in range(4): A(f'v_mov_b32 v{32 + r}, s{60 + 4*q + r}')
                A(f'global_store_dwordx4 v30, v[32:35], s[{sWS}:{sWS+1}] offset:{16*q}')
                A('s_nop 1')
        A('s_waitcnt vmcnt(0)')
    A('s_endpgm')
    for lslow, lback, r in slow:
        A(f'{lslow}:')
        A('s_mov_b64 exec, 1')
        A(f'global_load_dword v{vFlag}, v{vL16}, s[{sFLK}:{sFLK+1}] offset:{4 * r} sc1')
        A('s_mov_b64 exec, -1')
        A('s_waitcnt vmcnt(0)')
        A(f'v_readfirstlane_b32 s{sT+1}, v{vFlag}')
        timeout_check(A, 'L_fail')
        A(f's_cmp_lt_u32 s{sT+1}, s{sT+2}')
        A(f's_cbranch_scc1 {lslow}')
        A(f's_branch {lback}')
```

```python
from asmlib import *
from chain import (WS_KV, WS_KM, sWS, sDBG, sW, sH, sB, sTO, add64, timeout_check, f32bits, Lds, SM_SCALE_LOG2E)

WS_FLK = 0x07000000
WS_FLM = 0x07001000
WS_FLR = 0x07003000
WS_FLA = 0x07004000
WS_G   = 0x07010000
WS_FP  = 0x07100000
WS_AB  = 0x08200000
LW_X0  = 0
LW_X1  = 32768
LW_Q   = 65536
LW_O   = 73728
LW_K   = 81920
LW_STG = 32768
sR = 13
sXCC = 3
sA = 14; sA2 = 16
sX = 18
sSeg = 20
sI = 21
sN = 22
sT = 54
sXL = 23
sKVo = 24
vL16 = 1
vXG = 2
vXR = [4, 5, 6, 7]
vT0, vT1 = 8, 9

def x_setup(A):
    A(f'v_lshlrev_b32 v{vL16}, 4, v0')
    A(f'v_lshrrev_b32 v{vT0}, 3, v0')
    A(f's_lshl_b32 s{sT}, s{sW}, 3')
    A(f'v_add_u32 v{vT0}, s{sT}, v{vT0}')
    A(f'v_bfe_u32 v{vT1}, v{vT0}, 1, 3')
    A(f'v_and_b32 v{vXG}, 7, v0')
    A(f'v_xor_b32 v{vXG}, v{vXG}, v{vT1}')
    A(f'v_lshlrev_b32 v{vXG}, 4, v{vXG}')
    A(f'v_lshl_add_u32 v{vXG}, v{vT0}, 10, v{vXG}')
    A(f'v_and_b32 v{vT0}, 31, v0')
    A(f'v_bfe_u32 v{vT1}, v{vT0}, 1, 3')
    A(f'v_lshrrev_b32 v10, 5, v0')
    A(f'v_xor_b32 v{vT1}, v{vT1}, v10')
    A(f'v_lshlrev_b32 v{vT1}, 4, v{vT1}')
    A(f'v_and_b32 v10, 7, v{vT0}')
    A(f'v_lshl_add_u32 v{vT1}, v10, 7, v{vT1}')
    A(f'v_lshrrev_b32 v10, 3, v{vT0}')
    A(f'v_lshl_add_u32 v{vXR[0]}, v10, 13, v{vT1}')
    for k in range(1, 4): A(f'v_xor_b32 v{vXR[k]}, {32 * k}, v{vXR[0]}')

def x_dma(A, seg_sgpr, lds_base):
    A(f's_lshl_b32 s{sT}, s{seg_sgpr}, 15')
    add64(A, sA, sX, f's{sT}')
    A(f's_lshl_b32 s{sT}, s{sW}, 13')
    A(f's_add_u32 s{sT}, s{sT}, {lds_base}')
    for kc in range(8):
        A(f's_add_u32 m0, s{sT}, {kc * 1024 - kc * 128}')
        A('s_nop 0')
        A(f'global_load_lds_dwordx4 v{vXG}, s[{sA}:{sA+1}] offset:{kc * 128}')

def load_qkv_weights(A, w, srcs, dsts):
    vG = [12, 13, 14, 15]; vR = 16
    A(f'v_lshrrev_b32 v{vT0}, 4, v0')
    A(f'v_lshlrev_b32 v{vT1}, 2, v{vT0}')
    A(f'v_and_b32 v10, 15, v0')
    A(f'v_xor_b32 v10, v10, v{vT1}')
    A(f'v_lshlrev_b32 v10, 4, v10')
    A(f'v_add_u32 v{vT0}, {16 * w}, v{vT0}')
    A(f'v_lshl_add_u32 v{vG[0]}, v{vT0}, 13, v10')
    for ii in range(1, 4): A(f'v_add_u32 v{vG[ii]}, {ii * 32768}, v{vG[0]}')
    A(f'v_bfe_u32 v{vT0}, v0, 2, 2')
    A(f'v_xor_b32 v{vT1}, {w}, v{vT0}')
    A(f'v_lshlrev_b32 v{vT1}, 6, v{vT1}')
    A(f'v_lshrrev_b32 v10, 5, v0')
    A(f'v_lshl_add_u32 v{vT0}, v10, 3, v{vT0}')
    A(f'v_lshl_add_u32 v{vT1}, v{vT0}, 8, v{vT1}')
    A(f'v_bfe_u32 v10, v0, 4, 1')
    A(f'v_lshl_add_u32 v{vT1}, v10, 5, v{vT1}')
    A(f'v_and_b32 v10, 3, v0')
    A(f'v_lshl_add_u32 v11, v10, 3, v{vT1}')
    def dma(m, c):
        add64(A, sA, srcs[m], c * 64 * 8192)
        for ii in range(4):
            A(f's_mov_b32 m0, {LW_STG + c * 16384 + w * 4096 + ii * 1024}')
            A('s_nop 0')
            A(f'global_load_lds_dwordx4 v{vG[ii]}, s[{sA}:{sA+1}] nt')
    for c in range(8): dma(0, c)
    for m in range(len(srcs)):
        for c in range(8):
            left = (7 - c) * 4 if m == len(srcs) - 1 else 28
            A(f's_waitcnt vmcnt({left})')
            A('s_barrier')
            A(f'v_add_u32 v{vR}, {LW_STG + c * 16384}, v11')
            for ksl in range(4):
                for jj in range(2):
                    r = dsts[m] + (4 * c + ksl) * 4 + 2 * jj
                    A(f'ds_read_b64_tr_b16 {a_(r, 2)}, v{vR} offset:{ksl * 4096 + jj * 1024}')
            A('s_waitcnt lgkmcnt(0)')
            A('s_barrier')
            if m + 1 < len(srcs): dma(m + 1, c)

def p1_phase(A, opt):
    K = {'Wk': 60, 'Wv': 62}
    A('L_p1:')
    A(f's_mul_i32 s{sT}, s{sB}, 56')
    A(f's_add_u32 s{sA}, s0, s{sT}')
    A(f's_addc_u32 s{sA+1}, s1, 0')
    A(f's_load_dwordx4 s[60:63], s[{sA}:{sA+1}], 24')
    A(f's_load_dwordx2 s[{sX}:{sX+1}], s[0:1], 0')
    A('s_waitcnt lgkmcnt(0)')
    A(f's_lshl_b32 s{sT}, s{sH}, 8')
    for m in K: add64(A, K[m], K[m], f's{sT}')
    x_setup(A)
    A.c('first x tile into buffer 0 (outside the staging area)')
    A(f's_mov_b32 s{sSeg}, s{sR}')
    x_dma(A, sSeg, LW_X0)
    lend = A.label('p1w'); labs = [A.label(f'p1w{w}') for w in range(4)]
    for w in range(1, 4):
        A(f's_cmp_eq_u32 s{sW}, {w}'); A(f's_cbranch_scc1 {labs[w]}')
    for w in range(4):
        A(f'{labs[w]}:')
        load_qkv_weights(A, w, [K['Wk'], K['Wv']], [0, 128])
        if w < 3: A(f's_branch {lend}')
    A(f'{lend}:')
    vKs, vVs = 10, 11
    A(f'v_and_b32 v{vT0}, 15, v0')
    A(f'v_lshrrev_b32 v{vT1}, 5, v0')
    A(f'v_lshl_add_u32 v{vT0}, v{vT1}, 4, v{vT0}')
    A(f'v_lshlrev_b32 v{vT0}, 4, v{vT0}')
    A(f'v_bfe_u32 v{vT1}, v0, 4, 1')
    A(f'v_lshl_add_u32 v{vKs}, v{vT1}, 12, v{vT0}')
    A(f's_lshl_b32 s{sT}, s{sW}, 10')
    A(f'v_add_u32 v{vKs}, s{sT}, v{vKs}')
    A(f'v_lshl_add_u32 v{vVs}, v{vT1}, 10, v{vT0}')
    A(f's_lshl_b32 s{sT}, s{sW}, 11')
    A(f's_add_u32 s{sT}, s{sT}, 8192')
    A(f'v_add_u32 v{vVs}, s{sT}, v{vVs}')
    A(f's_cmp_eq_u32 s{sR}, 0')
    A(f's_cselect_b32 s{sN}, 22, 21')
    A(f's_mov_b32 s{sI}, 0')
    A(f's_mov_b32 s{sXL}, {LW_X0}')
    sFl = 26
    A(f's_lshl_b32 s{sT}, s{sB}, 5'); A(f's_add_u32 s{sT}, s{sT}, s{sH}')
    A(f's_lshl_b32 s{sT}, s{sT}, 4')
    A(f's_lshl_b32 s{sT+1}, s{sR}, 2'); A(f's_add_u32 s{sT}, s{sT}, s{sT+1}')
    A(f's_add_u32 s{sT}, s{sT}, {WS_FLK}')
    add64(A, sFl, sWS, f's{sT}')
    accK, accV = 32, 48
    xf = [64, 68, 72, 76]
    ok = 16; ov = 24
    A('.p2align 6')
    A('L_p1_loop:')
    A('s_waitcnt vmcnt(4)')
    A('s_barrier')
    l = A.label('nofl')
    A(f's_cmp_lt_u32 s{sI}, 2'); A(f's_cbranch_scc1 {l}')
    A(f's_cmp_lg_u32 s{sW}, 0'); A(f's_cbranch_scc1 {l}')
    A(f's_sub_u32 s{sT}, s{sI}, 1')
    A(f'v_mov_b32 v{vT0}, s{sT}'); A(f'v_mov_b32 v{vT1}, 0')
    A('s_mov_b64 exec, 1')
    A(f'global_store_dword v{vT1}, v{vT0}, s[{sFl}:{sFl+1}] sc1')
    A('s_mov_b64 exec, -1')
    A(f'{l}:')
    l = A.label('nonext')
    A(f's_add_u32 s{sT+2}, s{sI}, 1')
    A(f's_cmp_ge_u32 s{sT+2}, s{sN}'); A(f's_cbranch_scc1 {l}')
    A(f's_add_u32 s{sT+2}, s{sSeg}, 3')
    A(f's_xor_b32 s{sT+3}, s{sXL}, {LW_X0 ^ LW_X1}')
    x_dma(A, sT + 2, f's{sT+3}')
    A(f'{l}:')
    A(f's_lshl_b32 s{sT}, s{sB}, 6'); A(f's_add_u32 s{sT}, s{sT}, s{sSeg}')
    A(f's_lshl_b32 s{sT}, s{sT}, 5'); A(f's_add_u32 s{sT}, s{sT}, s{sH}')
    A(f's_lshl_b32 s{sT}, s{sT}, 14')
    add64(A, sKVo, sWS, f's{sT}')
    rx = [12, 13, 14, 15]
    for k in range(4): A(f'v_add_u32 v{rx[k]}, s{sXL}, v{vXR[k]}')
    def xr(ks): return f'ds_read_b128 {v(xf[ks & 3], 4)}, v{rx[ks & 3]} offset:{(ks >> 2) * 1024}'
    for ks in range(3): A(xr(ks))
    for ks in range(32):
        A(f's_waitcnt lgkmcnt({min(2, 31 - ks)})')
        ck = '0' if ks == 0 else v(accK, 16); cv = '0' if ks == 0 else v(accV, 16)
        A(f'v_mfma_f32_32x32x16_bf16 {v(accK,16)}, {a_(4*ks,4)}, {v(xf[ks & 3],4)}, {ck}')
        A(f'v_mfma_f32_32x32x16_bf16 {v(accV,16)}, {v(xf[ks & 3],4)}, {a_(128 + 4*ks,4)}, {cv}')
        if ks + 3 < 32: A(xr(ks + 3))
    A('s_nop 15'); A('s_nop 3')
    for i in range(8): A(f'v_cvt_pk_bf16_f32 v{ok + i}, v{accK + 2*i}, v{accK + 2*i + 1}')
    A(f'global_store_dwordx4 v{vKs}, {v(ok,4)}, s[{sKVo}:{sKVo+1}] sc1')
    A(f'global_store_dwordx4 v{vKs}, {v(ok+4,4)}, s[{sKVo}:{sKVo+1}] offset:512 sc1')
    for gq, qs in enumerate([(0, 2), (1, 3)]):
        for z, q in enumerate(qs):
            A(f'v_cvt_pk_bf16_f32 v{ov + 4*gq + 2*z}, v{accV + 4*q}, v{accV + 4*q + 1}')
            A(f'v_cvt_pk_bf16_f32 v{ov + 4*gq + 2*z + 1}, v{accV + 4*q + 2}, v{accV + 4*q + 3}')
    A(f'global_store_dwordx4 v{vVs}, {v(ov,4)}, s[{sKVo}:{sKVo+1}] sc1')
    A(f'global_store_dwordx4 v{vVs}, {v(ov+4,4)}, s[{sKVo}:{sKVo+1}] offset:512 sc1')
    if opt.get('gate', 1): gate_part(A, opt)
    A(f's_add_u32 s{sSeg}, s{sSeg}, 3')
    A(f's_xor_b32 s{sXL}, s{sXL}, {LW_X0 ^ LW_X1}')
    A(f's_add_u32 s{sI}, s{sI}, 1')
    A(f's_cmp_lt_u32 s{sI}, s{sN}')
    A('s_cbranch_scc1 L_p1_loop')
    A('s_waitcnt vmcnt(0)')
    A('s_barrier')
    l = A.label('nofl2')
    A(f's_cmp_lg_u32 s{sW}, 0'); A(f's_cbranch_scc1 {l}')
    A(f'v_mov_b32 v{vT0}, s{sN}'); A(f'v_mov_b32 v{vT1}, 0')
    A('s_mov_b64 exec, 1')
    A(f'global_store_dword v{vT1}, v{vT0}, s[{sFl}:{sFl+1}] sc1')
    A('s_mov_b64 exec, -1')
    A(f'{l}:')

def worker_clear(A):
    A(f'v_mov_b32 v{vT1}, 0')
    A('s_mov_b64 exec, 1')
    A(f's_lshl_b32 s{sT}, s{sB}, 5'); A(f's_add_u32 s{sT}, s{sT}, s{sH}'); A(f's_lshl_b32 s{sT}, s{sT}, 4')
    A(f's_lshl_b32 s{sT+1}, s{sR}, 2'); A(f's_add_u32 s{sT}, s{sT}, s{sT+1}'); A(f's_add_u32 s{sT}, s{sT}, {WS_FLK}')
    A(f'v_mov_b32 v{vT0}, s{sT}'); A(f'global_store_dword v{vT0}, v{vT1}, s[{sWS}:{sWS+1}] sc1')
    A(f's_lshl_b32 s{sT}, s{sXCC}, 5'); A(f's_add_u32 s{sT}, s{sT}, s{sH}'); A(f's_lshl_b32 s{sT}, s{sT}, 2')
    A(f's_add_u32 s{sT}, s{sT}, {WS_FLR}')
    A(f'v_mov_b32 v{vT0}, s{sT}'); A(f'global_store_dword v{vT0}, v{vT1}, s[{sWS}:{sWS+1}]')
    l = A.label('nofla0')
    A(f's_cmp_lg_u32 s{sB}, 0'); A(f's_cbranch_scc1 {l}')
    A(f's_lshl_b32 s{sT}, s{sR}, 5'); A(f's_add_u32 s{sT}, s{sT}, s{sH}'); A(f's_lshl_b32 s{sT}, s{sT}, 6')
    A(f's_add_u32 s{sT}, s{sT}, {WS_FLA}')
    A(f'v_mov_b32 v{vT0}, s{sT}'); A(f'global_store_dword v{vT0}, v{vT1}, s[{sWS}:{sWS+1}] sc1')
    A(f'{l}:')
    A('s_waitcnt vmcnt(0)')
    l = A.label('noann')
    A(f's_cmp_lg_u32 s{sW}, 0'); A(f's_cbranch_scc1 {l}')
    A(f's_lshl_b32 s{sT}, s{sXCC}, 2'); A(f's_add_u32 s{sT}, s{sT}, 32')
    A(f'v_mov_b32 v{vT0}, s{sT}'); A(f'v_mov_b32 v{vT1}, 1')
    A(f'global_atomic_add v{vT0}, v{vT1}, s[{sDBG}:{sDBG+1}] sc1')
    A(f'{l}:')
    A('s_mov_b64 exec, -1')

def wait_cleared(A):
    lw = A.label('wclr')
    A(f'v_and_b32 v{vT0}, 7, v0'); A(f'v_lshlrev_b32 v{vT0}, 2, v{vT0}'); A(f'v_add_u32 v{vT0}, 32, v{vT0}')
    A(f'{lw}:')
    A(f'global_load_dword v{vT1}, v{vT0}, s[{sDBG}:{sDBG+1}] sc1')
    A('s_waitcnt vmcnt(0)')
    A(f'v_cmp_gt_u32 vcc, 32, v{vT1}')
    timeout_check(A, 'L_fail')
    A(f's_cbranch_vccnz {lw}')

def gate_part(A, opt):
    l = A.label('nogate')
    A(f's_cmp_lg_u32 s{sB}, 1'); A(f's_cbranch_scc1 {l}')
    A(f's_cmp_lg_u32 s{sH}, s{sI}'); A(f's_cbranch_scc1 {l}')
    A(f's_cmp_lg_u32 s{sW}, 0'); A(f's_cbranch_scc1 {l}')
    A(f's_load_dwordx2 s[{sA2}:{sA2+1}], s[0:1], 112')
    acc = 32; gw = 80; xf = 64
    A(f'v_lshrrev_b32 v{vT0}, 5, v0'); A(f'v_lshlrev_b32 v{vT0}, 4, v{vT0}')
    A('s_waitcnt lgkmcnt(0)')
    for half in range(2):
        for q in range(16):
            ks = 16 * half + q
            A(f'global_load_dwordx4 {v(gw + 4*q, 4)}, v{vT0}, s[{sA2}:{sA2+1}] offset:{ks * 32}')
        A('s_waitcnt vmcnt(0)')
        for q in range(16):
            ks = 16 * half + q
            A(f'ds_read_b128 {v(xf,4)}, v{12 + (ks & 3)} offset:{(ks >> 2) * 1024}')
            A('s_waitcnt lgkmcnt(0)')
            c = '0' if ks == 0 else v(acc, 16)
            A(f'v_mfma_f32_32x32x16_bf16 {v(acc,16)}, {v(gw + 4*q,4)}, {v(xf,4)}, {c}')
    A('s_nop 15'); A('s_nop 3')
    A(f'v_mul_f32 v{vT0}, 0xbfb8aa3b, v{acc}')
    A(f'v_exp_f32 v{vT0}, v{vT0}')
    A('s_nop 0')
    A(f'v_add_f32 v{vT0}, 1.0, v{vT0}')
    A(f'v_rcp_f32 v{vT0}, v{vT0}')
    A(f's_lshl_b32 s{sT}, s{sSeg}, 7'); A(f's_add_u32 s{sT}, s{sT}, {WS_G}')
    add64(A, sA2, sWS, f's{sT}')
    A(f'v_lshlrev_b32 v{vT1}, 2, v0')
    A('s_mov_b32 exec_hi, 0')
    A(f'global_store_dword v{vT1}, v{vT0}, s[{sA2}:{sA2+1}]')
    A('s_mov_b64 exec, -1')
    A('s_waitcnt vmcnt(0)')
    A(f'{l}:')


def load_f_weights(A, w, sWq, sWo):
    vG = [12, 13, 14, 15]; vR = 16
    A(f'v_lshrrev_b32 v{vT0}, 4, v0')
    A(f'v_lshlrev_b32 v{vT1}, 2, v{vT0}')
    A(f'v_and_b32 v10, 15, v0')
    A(f'v_xor_b32 v10, v10, v{vT1}')
    A(f'v_lshlrev_b32 v10, 4, v10')
    A(f'v_add_u32 v{vT0}, {16 * w}, v{vT0}')
    A(f'v_lshl_add_u32 v{vG[0]}, v{vT0}, 13, v10')
    for ii in range(1, 4): A(f'v_add_u32 v{vG[ii]}, {ii * 32768}, v{vG[0]}')
    A(f'v_bfe_u32 v{vT0}, v0, 2, 2')
    A(f'v_xor_b32 v{vT1}, {w}, v{vT0}')
    A(f'v_lshlrev_b32 v{vT1}, 6, v{vT1}')
    A(f'v_lshrrev_b32 v10, 5, v0')
    A(f'v_lshl_add_u32 v17, v10, 3, v{vT0}')
    A(f'v_lshl_add_u32 v{vT1}, v17, 8, v{vT1}')
    A(f'v_bfe_u32 v17, v0, 4, 1')
    A(f'v_lshl_add_u32 v{vT1}, v17, 5, v{vT1}')
    A(f'v_and_b32 v18, 3, v0')
    A(f'v_lshl_add_u32 v11, v18, 3, v{vT1}')
    A(f'v_lshl_add_u32 v19, v10, 2, v{vT0}')
    A(f'v_lshlrev_b32 v19, 10, v19')
    A(f'v_lshl_add_u32 v19, v{vT0}, 6, v19')
    A(f'v_lshl_add_u32 v19, v17, 5, v19')
    A(f'v_lshl_add_u32 v19, v18, 3, v19')
    A(f'v_add_u32 v19, {LW_STG + 256 * w}, v19')
    def dma_q(c):
        add64(A, sA, sWq, c * 64 * 8192)
        for ii in range(4):
            A(f's_mov_b32 m0, {LW_STG + c * 16384 + w * 4096 + ii * 1024}')
            A('s_nop 0')
            A(f'global_load_lds_dwordx4 v{vG[ii]}, s[{sA}:{sA+1}] nt')
    def dma_o(c):
        for ii in range(4):
            e = 16 * c + 4 * w + ii
            add64(A, sA, sWo, e * 1024)
            A(f'v_xor_b32 v20, {64 * (e & 3)}, v{vL16}')
            A(f's_mov_b32 m0, {LW_STG + e * 1024}')
            A('s_nop 0')
            A(f'global_load_lds_dwordx4 v20, s[{sA}:{sA+1}] nt')
    for c in range(8): dma_q(c)
    for c in range(8):
        A('s_waitcnt vmcnt(28)')
        A('s_barrier')
        A(f'v_add_u32 v{vR}, {LW_STG + c * 16384}, v11')
        for ksl in range(4):
            for jj in range(2):
                A(f'ds_read_b64_tr_b16 {a_((4 * c + ksl) * 4 + 2 * jj, 2)}, v{vR} offset:{ksl * 4096 + jj * 1024}')
        A('s_waitcnt lgkmcnt(0)')
        A('s_barrier')
        dma_o(c)
    for tp in range(4):
        A(f's_waitcnt vmcnt({(3 - tp) * 8})')
        A('s_barrier')
        for ct in range(4):
            A(f'v_xor_b32 v{vR}, {64 * ct}, v19')
            A(f'v_add_u32 v{vR}, {tp * 32768}, v{vR}')
            for z in range(2):
                for jj in range(2):
                    kk = 2 * tp + z
                    A(f'ds_read_b64_tr_b16 {a_(128 + (ct * 8 + kk) * 4 + 2 * jj, 2)}, v{vR} offset:{z * 8192 + jj * 16384}')
        A('s_waitcnt lgkmcnt(0)')
    A('s_barrier')

def f_phase(A, opt):
    vQw, vKw, vOw, vFPs, vFPr, vOut, vKr, vQr, vAB = 10, 11, 16, 17, 18, 19, 20, 21, 22
    rx = [12, 13, 14, 15]
    MSK = 24
    ONE = 172; SEL = 176
    sWq, sWo = 60, 62
    sOut = 26; sFPb = 28; sFLR = 30; sFLM = 32; sFLA = 34; sKM = 36; sC = 48; sPrev = 38; sSlot = 39; sEX32 = 50
    A('L_f:')
    A(f's_mul_i32 s{sT}, s{sB}, 56')
    A(f's_add_u32 s{sA}, s0, s{sT}')
    A(f's_addc_u32 s{sA+1}, s1, 0')
    A(f's_load_dwordx2 s[{sWq}:{sWq+1}], s[{sA}:{sA+1}], 16')
    A(f's_load_dwordx2 s[{sWo}:{sWo+1}], s[{sA}:{sA+1}], 40')
    A(f's_load_dwordx2 s[{sOut}:{sOut+1}], s[0:1], 120')
    A(f's_load_dwordx2 s[{sX}:{sX+1}], s[0:1], 0')
    A('s_waitcnt lgkmcnt(0)')
    A(f's_lshl_b32 s{sT}, s{sH}, 8'); add64(A, sWq, sWq, f's{sT}')
    A(f's_lshl_b32 s{sT}, s{sH}, 17'); add64(A, sWo, sWo, f's{sT}')
    x_setup(A)
    A(f's_mov_b32 s{sSeg}, s{sR}')
    x_dma(A, sSeg, LW_X0)
    lend = A.label('fw'); labs = [A.label(f'fw{w}') for w in range(4)]
    for w in range(1, 4):
        A(f's_cmp_eq_u32 s{sW}, {w}'); A(f's_cbranch_scc1 {labs[w]}')
    for w in range(4):
        A(f'{labs[w]}:')
        load_f_weights(A, w, sWq, sWo)
        if w < 3: A(f's_branch {lend}')
    A(f'{lend}:')
    n32, g2 = 32, 33
    A(f'v_and_b32 v{n32}, 31, v0'); A(f'v_lshrrev_b32 v{g2}, 5, v0')
    A(f'v_and_b32 v34, 15, v0'); A(f'v_lshrrev_b32 v35, 4, v0')
    A(f'v_lshl_add_u32 v{vT0}, v{g2}, 4, v34'); A(f'v_lshlrev_b32 v{vT0}, 4, v{vT0}')
    A(f'v_bfe_u32 v{vT1}, v0, 4, 1'); A(f'v_lshl_add_u32 v{vT0}, v{vT1}, 10, v{vT0}')
    A(f's_lshl_b32 s{sT}, s{sW}, 11'); A(f's_add_u32 s{sT}, s{sT}, {LW_Q}')
    A(f'v_add_u32 v{vQw}, s{sT}, v{vT0}')
    A(f's_and_b32 s{sT}, s{sW}, 1'); A(f's_lshl_b32 s{sT}, s{sT}, 10'); A(f's_add_u32 s{sT}, s{sT}, {LW_Q}')
    A(f'v_add_u32 v{vQr}, s{sT}, v{vL16}')
    A(f's_lshl_b32 s{sT}, s{sW}, 5'); A(f'v_add_u32 v{vT0}, s{sT}, v34')
    A(f'v_lshlrev_b32 v{vT0}, 5, v{vT0}'); A(f'v_lshl_add_u32 v{vT0}, v35, 3, v{vT0}')
    A(f'v_add_u32 v{vKw}, {LW_K}, v{vT0}')
    A(f'v_bfe_u32 v{vT0}, v0, 5, 1'); A(f'v_lshlrev_b32 v{vT0}, 4, v{vT0}')
    A(f'v_bfe_u32 v{vT1}, v0, 4, 1'); A(f'v_lshl_add_u32 v{vT0}, v{vT1}, 2, v{vT0}')
    A(f'v_bfe_u32 v{vT1}, v0, 2, 2'); A(f'v_add_u32 v{vT0}, v{vT0}, v{vT1}')
    A(f'v_and_b32 v{vT1}, 3, v0'); A(f'v_lshlrev_b32 v{vT1}, 3, v{vT1}')
    A(f'v_lshl_add_u32 v{vT0}, v{vT0}, 5, v{vT1}'); A(f'v_add_u32 v{vKr}, {LW_K}, v{vT0}')
    A(f'v_lshrrev_b32 v{vT0}, 1, v35'); A(f'v_lshlrev_b32 v{vT0}, 10, v{vT0}')
    A(f'v_and_b32 v{vT1}, 1, v35'); A(f'v_lshl_add_u32 v{vT1}, v{vT1}, 5, v34')
    A(f'v_lshl_add_u32 v{vT0}, v{vT1}, 4, v{vT0}')
    A(f's_lshr_b32 s{sT}, s{sW}, 1'); A(f's_lshl_b32 s{sT}, s{sT}, 12')
    A(f's_and_b32 s{sT+1}, s{sW}, 1'); A(f's_lshl_b32 s{sT+1}, s{sT+1}, 8')
    A(f's_add_u32 s{sT}, s{sT}, s{sT+1}'); A(f's_add_u32 s{sT}, s{sT}, {LW_O}')
    A(f'v_add_u32 v{vOw}, s{sT}, v{vT0}')
    A(f's_lshl_b32 s{sT}, s{sW}, 18'); A(f's_lshl_b32 s{sT+1}, s{sH}, 10'); A(f's_add_u32 s{sT}, s{sT}, s{sT+1}')
    A(f'v_add_u32 v{vFPs}, s{sT}, v{vL16}')
    A(f's_lshr_b32 s{sT}, s{sW}, 1'); A(f's_lshl_b32 s{sT}, s{sT}, 5')
    A(f's_and_b32 s{sT+1}, s{sW}, 1'); A(f's_lshl_b32 s{sT+1}, s{sT+1}, 4'); A(f's_add_u32 s{sT}, s{sT}, s{sT+1}')
    A(f'v_add_u32 v{vT0}, s{sT}, v34'); A(f'v_lshlrev_b32 v{vT0}, 4, v{vT0}')
    A(f'v_lshl_add_u32 v{vT0}, v35, 10, v{vT0}')
    A(f's_lshl_b32 s{sT}, s{sH}, 15'); A(f'v_add_u32 v{vFPr}, s{sT}, v{vT0}')
    A(f's_and_b32 s{sT}, s{sW}, 1'); A(f's_lshl_b32 s{sT}, s{sT}, 4'); A(f'v_add_u32 v{vT0}, s{sT}, v34')
    A(f'v_lshlrev_b32 v{vT0}, 10, v{vT0}'); A(f'v_lshl_add_u32 v{vT0}, v35, 4, v{vT0}')
    A(f's_lshl_b32 s{sT}, s{sH}, 5'); A(f's_lshr_b32 s{sT+1}, s{sW}, 1'); A(f's_lshl_b32 s{sT+1}, s{sT+1}, 3')
    A(f's_add_u32 s{sT}, s{sT}, s{sT+1}'); A(f'v_add_u32 v{vOut}, s{sT}, v{vT0}')
    A(f's_lshl_b32 s{sT}, s{sH}, 11'); A(f's_lshl_b32 s{sT+1}, s{sW}, 9'); A(f's_add_u32 s{sT}, s{sT}, s{sT+1}')
    A(f'v_add_u32 v{vAB}, s{sT}, v{vL16}')
    A(f'v_add_u32 v23, 65536, v{vL16}')
    A(f's_and_b32 s{sT}, s{sW}, 1'); A(f's_lshl_b32 s{sT}, s{sT}, 4'); A(f'v_add_u32 v{vT0}, s{sT}, v34')
    A(f'v_lshlrev_b32 v{vT1}, 2, v35')
    A(f'v_mov_b32 v36, 0xf149f2ca')
    for kt in range(2):
        for r in range(4):
            A(f'v_add_u32 v37, {16 * kt + r}, v{vT1}')
            A(f'v_cmp_gt_u32 vcc, v37, v{vT0}')
            A('s_nop 1')
            A(f'v_cndmask_b32 v{MSK + 4*kt + r}, 0, v36, vcc')
    for r in range(4): A(f'v_mov_b32 v{ONE + r}, 0x3f803f80')
    A(f'v_and_b32 v{vT0}, 7, v0'); A(f'v_lshrrev_b32 v{vT1}, 1, v{vT0}')
    A(f'v_and_b32 v{vT0}, 1, v{vT0}'); A(f'v_lshlrev_b32 v{vT0}, 4, v{vT0}')
    A(f'v_mov_b32 v36, 0x3f80'); A(f'v_lshlrev_b32 v{vT0}, v{vT0}, v36')
    for d in range(4):
        A(f'v_cmp_eq_u32 vcc, {d}, v{vT1}'); A('s_nop 1'); A(f'v_cndmask_b32 v{SEL + d}, 0, v{vT0}, vcc')
    A(f's_mov_b32 s{sC}, {hex(f32bits(SM_SCALE_LOG2E))}')
    A(f's_lshl_b32 s{sT}, s{sXCC}, 21'); A(f's_add_u32 s{sT}, s{sT}, {WS_FP}'); add64(A, sFPb, sWS, f's{sT}')
    A(f's_lshl_b32 s{sT}, s{sXCC}, 7'); A(f's_add_u32 s{sT}, s{sT}, {WS_FLR}'); add64(A, sFLR, sWS, f's{sT}')
    A(f's_lshl_b32 s{sT}, s{sB}, 5'); A(f's_add_u32 s{sT}, s{sT}, s{sH}'); A(f's_lshl_b32 s{sT}, s{sT}, 6')
    A(f's_add_u32 s{sT}, s{sT}, {WS_FLM}'); add64(A, sFLM, sWS, f's{sT}')
    A(f's_lshl_b32 s{sT}, s{sR}, 5'); A(f's_add_u32 s{sT}, s{sT}, s{sH}'); A(f's_lshl_b32 s{sT}, s{sT}, 6')
    A(f's_add_u32 s{sT}, s{sT}, {WS_FLA}'); add64(A, sFLA, sWS, f's{sT}')
    A(f's_cmp_eq_u32 s{sR}, 0'); A(f's_cselect_b32 s{sN}, 22, 21')
    A(f's_mov_b32 s{sI}, 0'); A(f's_mov_b32 s{sXL}, {LW_X0}')

    def poll_ge(base, voff_ins, lanes_hi0, need_sgpr, tag):
        lp = A.label(tag)
        for x in voff_ins: A(x)
        A(f'{lp}:')
        A(f'global_load_dword v{vT1}, v{vT0}, s[{base}:{base+1}] sc1')
        A('s_waitcnt vmcnt(0)')
        A(f'v_cmp_gt_u32 vcc, s{need_sgpr}, v{vT1}')
        timeout_check(A, 'L_fail')
        A(f's_cbranch_vccnz {lp}')

    def reduce_prev():
        A(f's_mov_b32 s{sT+4}, s{sI}')
        poll_ge(sFLR, [f'v_and_b32 v{vT0}, 31, v0', f'v_lshlrev_b32 v{vT0}, 2, v{vT0}'], False, sT + 4, 'flr')
        A(f's_sub_u32 s{sT}, s{sI}, 1'); A(f's_and_b32 s{sT}, s{sT}, 1'); A(f's_lshl_b32 s{sT}, s{sT}, 20')
        add64(A, sA, sFPb, f's{sT}')
        RL = 192; acc = 180
        for i8 in range(8):
            A(f'global_load_dwordx4 {v(RL + 4*i8, 4)}, v{vFPr}, s[{sA}:{sA+1}] sc1')
            if i8 < 7: add64(A, sA, sA, 4096)
        for i8 in range(8):
            A(f's_waitcnt vmcnt({7 - i8})')
            c = '0' if i8 == 0 else v(acc, 4)
            A(f'v_mfma_f32_16x16x32_bf16 {v(acc,4)}, {v(SEL,4)}, {v(RL + 4*i8,4)}, {c}')
        A(f's_lshl_b32 s{sT}, s{sPrev}, 16'); A(f's_add_u32 s{sT}, s{sT}, {WS_AB}'); add64(A, sA, sWS, f's{sT}')
        lB = A.label('bside'); lE = A.label('redend')
        A(f's_cmp_eq_u32 s{sB}, 1'); A(f's_cbranch_scc1 {lB}')
        A('s_nop 7')
        A('s_mov_b32 exec_hi, 0')
        A(f'global_store_dwordx4 v{vAB}, {v(acc,4)}, s[{sA}:{sA+1}] sc1')
        A('s_mov_b64 exec, -1')
        A('s_waitcnt vmcnt(0)')
        A('s_barrier')
        l = A.label('nofla')
        A(f's_cmp_lg_u32 s{sW}, 0'); A(f's_cbranch_scc1 {l}')
        A(f'v_mov_b32 v{vT0}, s{sI}'); A(f'v_mov_b32 v{vT1}, 0')
        A('s_mov_b64 exec, 1')
        A(f'global_store_dword v{vT1}, v{vT0}, s[{sFLA}:{sFLA+1}] sc1')
        A('s_mov_b64 exec, -1')
        A(f'{l}:')
        A(f's_branch {lE}')
        A(f'{lB}:')
        poll_ge(sFLA, [f'v_mov_b32 v{vT0}, 0'], False, sT + 4, 'fla')
        A('s_barrier')
        A('s_mov_b32 exec_hi, 0')
        A(f'global_load_dwordx4 v[184:187], v{vAB}, s[{sA}:{sA+1}] sc1')
        A(f's_lshl_b32 s{sT}, s{sPrev}, 7'); A(f's_and_b32 s{sT+1}, s{sW}, 1'); A(f's_lshl_b32 s{sT+1}, s{sT+1}, 6')
        A(f's_add_u32 s{sT}, s{sT}, s{sT+1}'); A(f's_add_u32 s{sT}, s{sT}, {WS_G}'); add64(A, sA2, sWS, f's{sT}')
        A(f'v_and_b32 v{vT0}, 15, v0'); A(f'v_lshlrev_b32 v{vT0}, 2, v{vT0}')
        A(f'global_load_dword v188, v{vT0}, s[{sA2}:{sA2+1}] sc1')
        A('s_waitcnt vmcnt(0)')
        for r in range(4):
            A(f'v_sub_f32 v{184 + r}, v{184 + r}, v{acc + r}')
            A(f'v_fma_f32 v{184 + r}, v188, v{184 + r}, v{acc + r}')
        A('v_cvt_pk_bf16_f32 v184, v184, v185'); A('v_cvt_pk_bf16_f32 v185, v186, v187')
        A(f's_lshl_b32 s{sT}, s{sPrev}, 15'); add64(A, sA2, sOut, f's{sT}')
        A(f'global_store_dwordx2 v{vOut}, v[184:185], s[{sA2}:{sA2+1}]')
        A('s_mov_b64 exec, -1')
        A(f'{lE}:')

    A('.p2align 6')
    A('L_f_loop:')
    A('s_waitcnt vmcnt(0)')
    A('s_barrier')
    l = A.label('nonext')
    A(f's_add_u32 s{sT+2}, s{sI}, 1')
    A(f's_cmp_ge_u32 s{sT+2}, s{sN}'); A(f's_cbranch_scc1 {l}')
    A(f's_add_u32 s{sT+2}, s{sSeg}, 3')
    A(f's_xor_b32 s{sT+3}, s{sXL}, {LW_X0 ^ LW_X1}')
    x_dma(A, sT + 2, f's{sT+3}')
    A(f'{l}:')
    A(f's_lshl_b32 s{sT}, s{sB}, 6'); A(f's_add_u32 s{sT}, s{sT}, s{sSeg}')
    A(f's_lshl_b32 s{sT}, s{sT}, 5'); A(f's_add_u32 s{sT}, s{sT}, s{sH}')
    A(f's_lshl_b32 s{sT+1}, s{sT}, 14'); add64(A, sKVo, sWS, f's{sT+1}')
    A(f's_lshl_b32 s{sT+1}, s{sT}, 13'); A(f's_add_u32 s{sT+1}, s{sT+1}, {WS_KM}'); add64(A, sKM, sWS, f's{sT+1}')
    KX = 80; VX = 112
    add64(A, sA, sKVo, 4096)
    for i in range(8):
        b = sKVo if i < 4 else sA
        A(f'global_load_dwordx4 {v(KX + 4*i, 4)}, v{vL16}, s[{b}:{b+1}] offset:{1024 * (i & 3)} sc1')
    A(f's_lshr_b32 s{sT}, s{sW}, 1'); A(f's_lshl_b32 s{sT}, s{sT}, 12'); A(f's_add_u32 s{sT}, s{sT}, 8192')
    add64(A, sA2, sKVo, f's{sT}')
    for f in range(4): A(f'global_load_dwordx4 {v(VX + 4*f, 4)}, v{vL16}, s[{sA2}:{sA2+1}] offset:{1024 * f} sc1')
    for k in range(4): A(f'v_add_u32 v{rx[k]}, s{sXL}, v{vXR[k]}')
    accQ = 32; xf = [64, 68, 72, 76]
    def xr(ks): return f'ds_read_b128 {v(xf[ks & 3], 4)}, v{rx[ks & 3]} offset:{(ks >> 2) * 1024}'
    for ks in range(3): A(xr(ks))
    for ks in range(32):
        A(f's_waitcnt lgkmcnt({min(2, 31 - ks)})')
        c = '0' if ks == 0 else v(accQ, 16)
        A(f'v_mfma_f32_32x32x16_bf16 {v(accQ,16)}, {a_(4*ks,4)}, {v(xf[ks & 3],4)}, {c}')
        if ks + 3 < 32: A(xr(ks + 3))
    A('s_nop 15'); A('s_nop 3')
    for i in range(8): A(f'v_cvt_pk_bf16_f32 v{48 + i}, v{accQ + 2*i}, v{accQ + 2*i + 1}')
    A(f'ds_write_b128 v{vQw}, v[48:51]')
    A(f'ds_write_b128 v{vQw}, v[52:55] offset:512')
    l = A.label('noprev')
    A(f's_cmp_eq_u32 s{sI}, 0'); A(f's_cbranch_scc1 {l}')
    reduce_prev()
    A(f'{l}:')
    A(f's_add_u32 s{sT+4}, s{sSeg}, 1')
    if not opt.get('nowaitm'):
        poll_ge(sFLM, [f'v_mov_b32 v{vT0}, 0'], False, sT + 4, 'flm')
    A(f's_lshl_b32 s{sT}, s{sW}, 10'); add64(A, sA, sKM, f's{sT}')
    A(f'global_load_dwordx2 v[128:129], v{vL16}, s[{sA}:{sA+1}] sc1')
    A(f's_lshr_b32 s{sT}, s{sW}, 1'); A(f's_lshl_b32 s{sT}, s{sT}, 11'); add64(A, sA, sKM, f's{sT}')
    A(f'global_load_dwordx2 v[130:131], v{vL16}, s[{sA}:{sA+1}] offset:8 sc1')
    A(f'global_load_dwordx2 v[132:133], v{vL16}, s[{sA}:{sA+1}] offset:1032 sc1')
    A('s_waitcnt vmcnt(2)')
    A(f'ds_write_b32 v{vKw}, v128')
    A(f'ds_write_b32 v{vKw}, v129 offset:512')
    A('s_waitcnt lgkmcnt(0)')
    A('s_barrier')
    qf = [64, 68, 72, 76]; kf = [136, 140, 144, 148]
    for ks in range(4): A(f'ds_read_b128 {v(qf[ks],4)}, v{vQr} offset:{ks * 2048}')
    for ks in range(4):
        for jj in range(2):
            A(f'ds_read_b64_tr_b16 {v(kf[ks] + 2*jj, 2)}, v{vKr} offset:{ks * 1024 + jj * 256}')
    A('s_waitcnt vmcnt(0) lgkmcnt(0)')
    S = [32, 36]; Sm = 40
    for ks in range(4):
        for kt in range(2):
            c = v(MSK + 4*kt, 4) if ks == 0 else v(S[kt], 4)
            A(f'v_mfma_f32_16x16x32_bf16 {v(S[kt],4)}, {v(KX + 4*(4*kt + ks),4)}, {v(qf[ks],4)}, {c}')
        c = '0' if ks == 0 else v(Sm, 4)
        A(f'v_mfma_f32_16x16x32_bf16 {v(Sm,4)}, {v(kf[ks],4)}, {v(qf[ks],4)}, {c}')
    A('s_nop 7'); A('s_nop 1')
    sx = [S[0] + r for r in range(4)] + [S[1] + r for r in range(4)]
    A(f'v_max3_f32 v{vT0}, v{sx[0]}, v{sx[1]}, v{sx[2]}')
    A(f'v_max3_f32 v{vT1}, v{sx[3]}, v{sx[4]}, v{sx[5]}')
    A(f'v_max3_f32 v{vT0}, v{vT0}, v{sx[6]}, v{sx[7]}')
    A(f'v_max3_f32 v{vT0}, v{vT0}, v{Sm}, v{Sm+1}')
    A(f'v_max_f32 v{vT0}, v{vT0}, v{vT1}')
    A(f'v_mov_b32 v{vT1}, v{vT0}'); A('s_nop 1')
    A(f'v_permlane16_swap_b32 v{vT0}, v{vT1}')
    A(f'v_max_f32 v{vT0}, v{vT0}, v{vT1}')
    A(f'v_mov_b32 v{vT1}, v{vT0}'); A('s_nop 1')
    A(f'v_permlane32_swap_b32 v{vT0}, v{vT1}')
    A(f'v_max_f32 v{vT0}, v{vT0}, v{vT1}')
    A(f'v_mul_f32 v{vT0}, s{sC}, v{vT0}')
    for r in sx + [Sm, Sm + 1]: A(f'v_fma_f32 v{r}, v{r}, s{sC}, -v{vT0}')
    for r in sx + [Sm, Sm + 1]: A(f'v_exp_f32 v{r}, v{r}')
    Px = 44; Pm = 48
    A('v_mov_b32 v49, 0'); A('v_mov_b32 v50, 0')
    for i in range(4): A(f'v_cvt_pk_bf16_f32 v{Px + i}, v{sx[2*i]}, v{sx[2*i+1]}')
    A(f'v_cvt_pk_bf16_f32 v48, v{Sm}, v{Sm+1}'); A(f'v_cvt_pk_bf16_f32 v51, v{Sm}, v{Sm+1}')
    O = [152 + 4*f for f in range(4)]; lacc = 168
    A('s_nop 1')
    A(f'v_mfma_f32_16x16x32_bf16 {v(lacc,4)}, {v(ONE,4)}, {v(Px,4)}, 0')
    for f in range(4): A(f'v_mfma_f32_16x16x32_bf16 {v(O[f],4)}, {v(VX + 4*f,4)}, {v(Px,4)}, 0')
    A(f'v_mfma_f32_16x16x16_bf16 {v(lacc,4)}, {v(ONE,2)}, v[48:49], {v(lacc,4)}')
    for f in range(4):
        bop = 'v[48:49]' if f % 2 == 0 else 'v[50:51]'
        A(f'v_mfma_f32_16x16x16_bf16 {v(O[f],4)}, {v(130 + 2*(f >> 1),2)}, {bop}, {v(O[f],4)}')
    A('s_nop 7'); A('s_nop 1')
    A(f'v_rcp_f32 v{vT0}, v{lacc}'); A('s_nop 0')
    for r in range(16): A(f'v_mul_f32 v{152 + r}, v{152 + r}, v{vT0}')
    for r in range(8): A(f'v_cvt_pk_bf16_f32 v{152 + r}, v{152 + 2*r}, v{153 + 2*r}')
    A(f'ds_write_b128 v{vOw}, v[152:155]')
    A(f'ds_write_b128 v{vOw}, v[156:159] offset:2048')
    A('s_waitcnt lgkmcnt(0)')
    A('s_barrier')
    of = [64 + 4*k for k in range(8)]
    for kk in range(8): A(f'ds_read_b128 {v(of[kk],4)}, v{vL16} offset:{LW_O - 65536 + kk * 1024}'.replace(f'v{vL16}', 'v23'))
    acc = [192 + 16*ct for ct in range(4)]
    for kk in range(8):
        A(f's_waitcnt lgkmcnt({7 - kk})')
        for ct in range(4):
            c = '0' if kk == 0 else v(acc[ct], 16)
            A(f'v_mfma_f32_32x32x16_bf16 {v(acc[ct],16)}, {a_(128 + (ct*8 + kk)*4,4)}, {v(of[kk],4)}, {c}')
    A('s_nop 15'); A('s_nop 3')
    A(f's_and_b32 s{sT}, s{sI}, 1'); A(f's_lshl_b32 s{sT}, s{sT}, 20'); add64(A, sA, sFPb, f's{sT}')
    for ct in range(4):
        o = 32 + 8 * (ct & 1)
        for i in range(8): A(f'v_cvt_pk_bf16_f32 v{o + i}, v{acc[ct] + 2*i}, v{acc[ct] + 2*i + 1}')
        for qq in range(2):
            A(f'global_store_dwordx4 v{vFPs}, {v(o + 4*qq, 4)}, s[{sA}:{sA+1}]')
            add64(A, sA, sA, 32768)
    A('s_waitcnt vmcnt(0)')
    A('s_barrier')
    l = A.label('noflr')
    A(f's_cmp_lg_u32 s{sW}, 0'); A(f's_cbranch_scc1 {l}')
    A(f's_add_u32 s{sT}, s{sI}, 1')
    A(f'v_mov_b32 v{vT0}, s{sT}'); A(f's_lshl_b32 s{sT}, s{sH}, 2'); A(f'v_mov_b32 v{vT1}, s{sT}')
    A('s_mov_b64 exec, 1')
    A(f'global_store_dword v{vT1}, v{vT0}, s[{sFLR}:{sFLR+1}]')
    A('s_mov_b64 exec, -1')
    A(f'{l}:')
    A(f's_mov_b32 s{sPrev}, s{sSeg}')
    A(f's_add_u32 s{sSeg}, s{sSeg}, 3')
    A(f's_xor_b32 s{sXL}, s{sXL}, {LW_X0 ^ LW_X1}')
    A(f's_add_u32 s{sI}, s{sI}, 1')
    A(f's_cmp_lt_u32 s{sI}, s{sN}')
    A('s_cbranch_scc1 L_f_loop')
    reduce_prev()
    A('s_waitcnt vmcnt(0)')
```

```python
import sys, json
from asmlib import *
import chain as CH
import worker as WK
from chain import sWS, sDBG, sW, sH, sB, sTO, sT

NAME = 'gated_mix__memory_aug_recurrent_mem_tr__memory_aug_recurrent_mem_tr__prompt'
HEADER = open('cdna_kernels/' + NAME + '.s.ref').read().split('; Override launch geometry')[0]

def prologue(A, opt):
    A('s_cmp_ge_u32 s2, 256')
    A('s_cbranch_scc1 L_exit')
    A(f's_load_dwordx2 s[{sWS}:{sWS+1}], s[0:1], 136')
    A(f's_load_dwordx2 s[{sDBG}:{sDBG+1}], s[0:1], 128')
    A('s_getreg_b32 s13, hwreg(HW_REG_XCC_ID, 0, 4)')
    A('v_lshrrev_b32 v1, 6, v0')
    A('v_and_b32 v0, 63, v0')
    A(f's_mov_b32 s{sTO}, 0x00200000')
    A(f'v_readfirstlane_b32 s{sW}, v1')
    A('s_and_b32 s13, s13, 7')
    A('s_waitcnt lgkmcnt(0)')
    l = A.label('notick')
    A(f's_cmp_lg_u32 s{sW}, 0'); A(f's_cbranch_scc1 {l}')
    A('s_lshl_b32 s14, s13, 2')
    A('v_mov_b32 v2, s14')
    A('v_mov_b32 v3, 1')
    A('s_mov_b64 exec, 1')
    A(f'global_atomic_add v4, v2, v3, s[{sDBG}:{sDBG+1}] sc0 sc1')
    A('s_waitcnt vmcnt(0)')
    A('v_mov_b32 v2, 0')
    A('ds_write_b32 v2, v4')
    A('s_waitcnt lgkmcnt(0)')
    A('s_mov_b64 exec, -1')
    A(f'{l}:')
    A('s_barrier')
    A('v_mov_b32 v2, 0')
    A('ds_read_b32 v4, v2')
    A('s_waitcnt lgkmcnt(0)')
    A(f'v_readfirstlane_b32 s{sH}, v4')
    A('s_barrier')
    A(f's_cmp_ge_u32 s{sH}, 32')
    A('s_cbranch_scc1 L_exit')
    A(f's_mov_b32 s{sB}, s13')

def worker_ids(A):
    A('s_mov_b32 s3, s13')
    A('s_sub_u32 s13, s13, 2')
    A(f's_and_b32 s{sB}, s13, 1')
    A('s_lshr_b32 s13, s13, 1')

def footer(A):
    A('L_fail:')
    A('v_mov_b32 v2, 252')
    A('v_mov_b32 v3, 0xdead')
    A('s_mov_b64 exec, 1')
    A(f'global_store_dword v2, v3, s[{sDBG}:{sDBG+1}] sc1')
    A('s_waitcnt vmcnt(0)')
    A('L_exit:')
    A('s_endpgm')

def build(opt):
    A = Asm()
    kname = NAME + '_kernel'
    A.lines.append(HEADER.rstrip('\n'))
    A.lines.append('; Override launch geometry by editing the next line (harness parses it).')
    A.lines.append('; @launch grid=(256,1,1) block=(256,1,1) lds=163840')
    A('.amdgcn_target "amdgcn-amd-amdhsa--gfx950"')
    A('.text')
    A(f'.globl {kname}')
    A('.p2align 8')
    A(f'.type {kname},@function')
    A(f'{kname}:')
    prologue(A, opt)
    if opt['mode'] == 'chain_test':
        A('s_cmp_lt_u32 s13, 2')
        A('s_cbranch_scc0 L_exit')
        CH.chain_role(A, opt)
    if opt['mode'] == 'p1_test':
        A('s_cmp_lt_u32 s13, 2')
        A('s_cbranch_scc1 L_exit')
        worker_ids(A)
        WK.p1_phase(A, opt)
        A('s_endpgm')
    if opt['mode'] == 'full':
        opt = dict(opt); opt['integ'] = 1
        A('s_cmp_lt_u32 s13, 2')
        A('s_cbranch_scc0 L_worker')
        CH.chain_role(A, opt)
        A('L_worker:')
        worker_ids(A)
        WK.worker_clear(A)
        WK.p1_phase(A, opt)
        WK.wait_cleared(A)
        WK.f_phase(A, opt)
        A('s_endpgm')
    if opt['mode'] == 'f_test':
        A('s_cmp_lt_u32 s13, 2')
        A('s_cbranch_scc1 L_exit')
        worker_ids(A)
        WK.f_phase(A, opt)
        A('s_endpgm')
    footer(A)
    A('.section .rodata,"a"')
    A('.p2align 6')
    A(f'.amdhsa_kernel {kname}')
    A('.amdhsa_next_free_vgpr 512')
    A('.amdhsa_next_free_sgpr 102')
    A('.amdhsa_accum_offset 256')
    A('.amdhsa_group_segment_fixed_size 0')
    A('.amdhsa_kernarg_size 144')
    A('.amdhsa_user_sgpr_count 2')
    A('.amdhsa_user_sgpr_kernarg_segment_ptr 1')
    A('.amdhsa_system_sgpr_workgroup_id_x 1')
    A('.amdhsa_float_denorm_mode_32 3')
    A('.end_amdhsa_kernel')
    return A.text()

if __name__ == '__main__':
    out = sys.argv[1]
    opt = json.loads(sys.argv[2])
    open(out, 'w').write(build(opt))
```

```python
class Asm:
    def __init__(self):
        self.lines = []
        self.uid = 0
    def __call__(self, s=''):
        for l in s.split('\n'):
            l = l.strip()
            if l == '':
                continue
            if l.endswith(':') or l.startswith('.') or l.startswith(';'):
                self.lines.append(l)
            else:
                self.lines.append('    ' + l)
    def c(self, s):
        self.lines.append('    ; ' + s)
    def label(self, base):
        self.uid += 1
        return f'L_{base}_{self.uid}'
    def text(self):
        return '\n'.join(self.lines) + '\n'

def v(a, n=1):
    return f'v{a}' if n == 1 else f'v[{a}:{a+n-1}]'
def a_(a, n=1):
    return f'a{a}' if n == 1 else f'a[{a}:{a+n-1}]'
def s(a, n=1):
    return f's{a}' if n == 1 else f's[{a}:{a+n-1}]'


TRACE_BASE = 0x06800000
def trace(A, opt, idx, sW=8, sWS=4, dyn=None):
    if not opt.get('trace'): return
    l = A.label('tr')
    A(f's_cmp_lg_u32 s{sW}, 0'); A(f's_cbranch_scc1 {l}')
    A('s_memrealtime s[96:97]')
    A('s_waitcnt lgkmcnt(0)')
    if dyn is None: A(f's_add_u32 s98, s100, {idx * 4}')
    else:
        A(f's_lshl_b32 s98, s{dyn}, 2'); A(f's_add_u32 s98, s98, s100'); A(f's_add_u32 s98, s98, {idx * 4}')
    A('v_mov_b32 %s, s98' % opt['tracev'][0]); A('v_mov_b32 %s, s96' % opt['tracev'][1])
    A('s_mov_b64 exec, 1')
    A(f'global_store_dword %s, %s, s[{sWS}:{sWS+1}]' % (opt['tracev'][0], opt['tracev'][1]))
    A('s_mov_b64 exec, -1')
    A(f'{l}:')
```

```python
from asmlib import *
import struct

WS_KV   = 0x00000000
WS_KM   = 0x04000000
WS_PR   = 0x06000000
WS_MR   = 0x06F00000
WS_FLK  = 0x07000000
WS_FLM  = 0x07001000
WS_DUMMY= 0x06F80000
WS_DBGM = 0x06200000

L_MEM  = 0
L_Q    = 8192
L_K    = 10240
L_ZERO = 14336
L_WOA  = 16384
L_WOB  = 57344
L_VL   = 98304
L_KV1  = 131072
L_KV0  = 147456
L_STG  = 16384
TL = [0, 1, 2, 6, 7]

vVL  = 0
vIDX = 1
vM = [2, 3, 4, 5]
vQw, vKw, vQr, vKr = 6, 7, 8, 9
vKX, vVX = 10, 11
vOw, vL16 = 12, 13
vWoA, vWoB = 14, 15
vPst, vRed, vMst = 16, 17, 18
vFlag = 19
ONE = 20
vPub = 24
vT0, vT1 = 26, 27
mA = [32 + 4 * c for c in range(8)]
accQ, accK, accV = 64, 72, 80
qf = [64, 68, 88, 92]
kf = [72, 76, 96, 100]
Sx = [104, 108]
Sm = 28
WRES = 112
WV = 128
def wv_home(ft, c): return WV + (ft * 8 + c) * 8
WO_HOME = {(3, 0): WRES, (3, 1): WRES + 8, (4, 0): wv_home(0, 2), (4, 1): wv_home(0, 3), (5, 0): wv_home(1, 2), (5, 1): wv_home(1, 3)}
VSTREAM = [(0, 2), (1, 2), (0, 3), (1, 3)]
VSBUF = [88, 96, 104, 32]
sWS = 4; sDBG = 6
sW, sH, sB = 8, 9, 10
sStep = 11
sTO = 12
sA = 14; sA2 = 16
sP0 = [18, 22, 26]
sP1 = [20, 24, 28]
sPr = [30, 32, 34]
sM = [36, 38, 40]
sKV = 42
sKMk = 44
sKMv = 46
sC = 48
sEX = 50
sKVL = 53
sTag = 52
sT = 54
sFLK = 60
sFLM = 62
sFE = 64
sNeed = 66

SM_SCALE_LOG2E = (128 ** -0.5) * 1.4426950408889634
def f32bits(x): return struct.unpack('<I', struct.pack('<f', x))[0]

def add64(A, dst, src, off):
    A(f's_add_u32 s{dst}, s{src}, {off}')
    A(f's_addc_u32 s{dst+1}, s{src+1}, 0')

def chain_startup_weights(A, w, K, nt='nt'):
    vG = [40, 41, 42, 43]; vR = [44, 45]; vX = 46; vY = 47; vZ = 48
    tmpV = (w * 8192) if w < 2 else (L_KV0 + (w - 2) * 8192)
    def dma_qkv_chunk(mat, c):
        add64(A, sA, K[mat], c * 64 * 8192)
        for ii in range(4):
            A(f's_mov_b32 m0, {L_STG + c * 16384 + w * 4096 + ii * 1024}')
            A('s_nop 0')
            A(f'global_load_lds_dwordx4 v{vG[ii]}, s[{sA}:{sA+1}] {nt}')
    def dma_wo_chunk(c):
        for ii in range(4):
            e = 16 * c + 4 * w + ii
            x = (((e >> 5) & 1) << 2) | (((e >> 4) & 1) << 1) | (e & 1)
            add64(A, sA, K['Wo'], e * 1024)
            A(f'v_xor_b32 v{vZ}, {32 * x}, v{vL16}')
            A(f's_mov_b32 m0, {L_STG + c * 16384 + (4 * w + ii) * 1024}')
            A('s_nop 0')
            A(f'global_load_lds_dwordx4 v{vZ}, s[{sA}:{sA+1}] {nt}')
    A(f'v_lshrrev_b32 v{vX}, 4, v0')
    A(f'v_and_b32 v{vY}, 1, v{vX}')
    A(f'v_or_b32 v{vY}, {((w >> 1) << 2) | ((w & 1) << 1)}, v{vY}')
    A(f'v_lshlrev_b32 v{vY}, 1, v{vY}')
    A(f'v_and_b32 v{vZ}, 15, v0')
    A(f'v_xor_b32 v{vZ}, v{vZ}, v{vY}')
    A(f'v_lshlrev_b32 v{vZ}, 4, v{vZ}')
    A(f'v_add_u32 v{vX}, {16 * w}, v{vX}')
    A(f'v_lshlrev_b32 v{vX}, 13, v{vX}')
    A(f'v_add_u32 v{vG[0]}, v{vX}, v{vZ}')
    for ii in range(1, 4):
        A(f'v_add_u32 v{vG[ii]}, {ii * 32768}, v{vG[0]}')
    A(f'v_bfe_u32 v{vX}, v0, 3, 1')
    A(f'v_bfe_u32 v{vY}, v0, 4, 1')
    A(f'v_bfe_u32 v{vZ}, v0, 2, 1')
    A(f'v_lshlrev_b32 v49, 2, v{vX}')
    A(f'v_lshl_or_b32 v49, v{vY}, 1, v49')
    A(f'v_or_b32 v49, v49, v{vZ}')
    A(f'v_lshlrev_b32 v50, 5, v{vX}')
    A(f'v_lshl_or_b32 v50, v{vY}, 4, v50')
    A(f'v_or_b32 v50, v50, v{vZ}')
    A(f'v_bfe_u32 v51, v0, 5, 1')
    A(f'v_lshl_or_b32 v50, v51, 2, v50')
    A(f'v_and_b32 v51, 3, v0')
    A(f'v_lshlrev_b32 v51, 3, v51')
    A(f'v_xor_b32 v52, {2 * w}, v49')
    A(f'v_lshlrev_b32 v52, 5, v52')
    A(f'v_lshl_or_b32 v52, v50, 8, v52')
    A(f'v_add_u32 v52, v52, v51')
    A(f'v_lshlrev_b32 v53, 5, v49')
    A(f'v_lshl_or_b32 v53, v50, 10, v53')
    A(f'v_add_u32 v53, v53, v51')
    A(f'v_add_u32 v53, {L_STG + 256 * w}, v53')
    A(f'v_add_u32 v55, {tmpV}, v{vL16}')
    for c in range(8):
        dma_qkv_chunk('Wq', c)
    nxt = {'Wq': 'Wk', 'Wk': 'Wv', 'Wv': 'Wo'}
    for mat in ['Wq', 'Wk', 'Wv']:
        for c in range(8):
            A('s_waitcnt vmcnt(28)')
            A('s_barrier')
            cc = (c - 2 * w) & 7
            A(f'v_add_u32 v{vR[0]}, {L_STG + c * 16384}, v52')
            A(f'v_xor_b32 v{vR[1]}, 32, v{vR[0]}')
            streamed = (mat == 'Wv' and cc in (2, 3))
            for ft in range(2):
                for z in range(4):
                    off = 2048 * (z >> 1) + 512 * (z & 1)
                    r = (ft * 8 + cc) * 8 + 2 * z
                    if mat == 'Wq': dst = a_(r, 2)
                    elif mat == 'Wk': dst = a_(128 + r, 2)
                    elif streamed: dst = v(56 + 8 * ft + 2 * z, 2)
                    else: dst = v(WV + r, 2)
                    A(f'ds_read_b64_tr_b16 {dst}, v{vR[ft]} offset:{off}')
            A('s_waitcnt lgkmcnt(0)')
            if streamed:
                for ft in range(2):
                    i = VSTREAM.index((ft, cc))
                    A(f'ds_write_b128 v55, {v(56 + 8*ft, 4)} offset:{i * 2048}')
                    A(f'ds_write_b128 v55, {v(60 + 8*ft, 4)} offset:{i * 2048 + 1024}')
                A('s_waitcnt lgkmcnt(0)')
            A('s_barrier')
            if nxt[mat] == 'Wo': dma_wo_chunk(c)
            else: dma_qkv_chunk(nxt[mat], c)
    def wo_read(t, ks2, dst):
        A(f'v_xor_b32 v54, {32 * t}, v53')
        if ks2: A(f'v_add_u32 v54, 65536, v54')
        for z in range(4):
            A(f'ds_read_b64_tr_b16 {v(dst + 2 * z, 2)}, v54 offset:{8192 * (z >> 1) + 2048 * (z & 1)}')
    A('s_waitcnt vmcnt(0)')
    A('s_barrier')
    for ks2, base in [(0, vWoA), (1, vWoB)]:
        for t in (3, 4, 5): wo_read(t, ks2, WO_HOME[(t, ks2)])
        for i, t in enumerate(TL): wo_read(t, ks2, 56 + 8 * i)
        A('s_waitcnt lgkmcnt(0)')
        A('s_barrier')
        for i, t in enumerate(TL):
            A(f'ds_write_b128 v{base}, {v(56 + 8*i, 4)} offset:{i * 2048}')
            A(f'ds_write_b128 v{base}, {v(60 + 8*i, 4)} offset:{i * 2048 + 1024}')
        A('s_waitcnt lgkmcnt(0)')
    for i in range(8):
        A(f'ds_read_b128 {v(56 + 4*i, 4)}, v55 offset:{i * 1024}')
    A(f'v_add_u32 v54, {L_VL + w * 8192}, v{vL16}')
    A('s_waitcnt lgkmcnt(0)')
    for i in range(8):
        A(f'ds_write_b128 v54, {v(56 + 4*i, 4)} offset:{i * 1024}')
    A('s_waitcnt lgkmcnt(0)')

def chain_setup_persistent(A):
    A(f'v_lshlrev_b32 v{vL16}, 4, v0')
    A(f'v_bfe_u32 v{vT0}, v0, 1, 1')
    A(f'v_mul_u32_u24 v{vT0}, 0xAAAA, v{vT0}')
    A(f'v_add_u32 v{vIDX}, 0x4444, v{vT0}')
    for i in range(4):
        A(f's_add_u32 s{sT}, s{sW}, {i}')
        A(f's_and_b32 s{sT}, s{sT}, 3')
        A(f's_lshl_b32 s{sT}, s{sT}, 11')
        A(f'v_add_u32 v{vM[i]}, s{sT}, v{vL16}')
    A(f'v_and_b32 v{vT0}, 15, v0')
    A(f'v_lshrrev_b32 v{vT1}, 4, v0')
    A(f's_lshl_b32 s{sT}, s{sW}, 5')
    A(f'v_add_u32 v30, s{sT}, v{vT0}')
    A(f'v_lshlrev_b32 v31, 4, v30')
    A(f'v_lshl_add_u32 v31, v{vT1}, 2, v31')
    A(f'v_add_u32 v{vQw}, {L_Q}, v31')
    A(f'v_lshlrev_b32 v31, 5, v30')
    A(f'v_lshl_add_u32 v31, v{vT1}, 3, v31')
    A(f'v_add_u32 v{vKw}, {L_K}, v31')
    A(f'v_bfe_u32 v30, v0, 5, 1')
    A(f'v_lshlrev_b32 v30, 4, v30')
    A(f'v_bfe_u32 v31, v0, 4, 1')
    A(f'v_lshl_add_u32 v30, v31, 2, v30')
    A(f'v_bfe_u32 v31, v0, 2, 2')
    A(f'v_add_u32 v30, v30, v31')
    A(f'v_and_b32 v31, 1, v0')
    A(f'v_lshlrev_b32 v31, 3, v31')
    A(f'v_lshl_add_u32 v31, v30, 4, v31')
    A(f'v_add_u32 v{vQr}, {L_Q}, v31')
    A(f'v_and_b32 v31, 3, v0')
    A(f'v_lshlrev_b32 v31, 3, v31')
    A(f'v_lshl_add_u32 v31, v30, 5, v31')
    A(f'v_add_u32 v{vKr}, {L_K}, v31')
    A(f'v_add_u32 v{vKX}, {L_KV0}, v{vL16}')
    A(f's_lshl_b32 s{sT}, s{sW}, 11')
    A(f's_add_u32 s{sT}, s{sT}, {L_KV0 + 8192}')
    A(f'v_add_u32 v{vVX}, s{sT}, v{vL16}')
    A(f'v_lshlrev_b32 v30, 4, v{vT1}')
    A(f'v_bfe_u32 v31, v{vT0}, 1, 2')
    A(f'v_lshl_add_u32 v30, v31, 2, v30')
    A(f'v_and_b32 v31, 1, v{vT0}')
    A(f'v_add_u32 v30, v30, v31')
    A(f's_and_b32 s{sT}, s{sW}, 1')
    A(f's_lshl_b32 s{sT}, s{sT}, 1')
    A(f'v_add_u32 v30, s{sT}, v30')
    A(f'v_lshlrev_b32 v30, 4, v30')
    A(f'v_lshrrev_b32 v31, 3, v{vT0}')
    A(f'v_lshl_add_u32 v30, v31, 3, v30')
    A(f's_lshr_b32 s{sT}, s{sW}, 1')
    A(f's_lshl_b32 s{sT}, s{sT}, 10')
    A(f'v_add_u32 v{vOw}, s{sT}, v30')
    A(f's_mul_i32 s{sT}, s{sW}, {5 * 2048}')
    A(f's_add_u32 s{sT+1}, s{sT}, {L_WOA}')
    A(f'v_add_u32 v{vWoA}, s{sT+1}, v{vL16}')
    A(f's_add_u32 s{sT+1}, s{sT}, {L_WOB}')
    A(f'v_add_u32 v{vWoB}, s{sT+1}, v{vL16}')
    A(f'v_lshrrev_b32 v30, 2, v{vT0}')
    A(f's_lshl_b32 s{sT}, s{sW}, 3')
    A(f'v_add_u32 v30, s{sT}, v30')
    A(f'v_lshlrev_b32 v30, 13, v30')
    A(f'v_and_b32 v31, 3, v{vT0}')
    A(f'v_lshl_add_u32 v31, v{vT1}, 2, v31')
    A(f'v_lshl_add_u32 v30, v31, 4, v30')
    A(f's_lshl_b32 s{sT}, s{sH}, 8')
    A(f'v_add_u32 v{vPst}, s{sT}, v30')
    A(f'v_and_b32 v30, 1, v{vT0}')
    A(f'v_lshl_add_u32 v30, v{vT1}, 1, v30')
    A(f'v_lshlrev_b32 v30, 8, v30')
    A(f'v_lshrrev_b32 v31, 1, v{vT0}')
    A(f'v_lshl_add_u32 v30, v31, 4, v30')
    A(f's_lshl_b32 s{sT}, s{sH}, 13')
    A(f's_and_b32 s{sT+1}, s{sW}, 1')
    A(f's_lshl_b32 s{sT+1}, s{sT+1}, 7')
    A(f's_add_u32 s{sT}, s{sT}, s{sT+1}')
    A(f'v_add_u32 v{vRed}, s{sT}, v30')
    A(f'v_and_b32 v30, 1, v{vT0}')
    A(f'v_bfe_u32 v31, v{vT0}, 2, 1')
    A(f'v_lshl_add_u32 v30, v31, 1, v30')
    A(f'v_lshrrev_b32 v31, 1, v{vT1}')
    A(f'v_lshl_add_u32 v30, v31, 2, v30')
    A(f'v_lshlrev_b32 v30, 4, v30')
    A(f'v_bfe_u32 v31, v{vT0}, 1, 1')
    A(f'v_lshl_add_u32 v30, v31, 3, v30')
    A(f'v_and_b32 v31, 1, v{vT1}')
    A(f'v_lshl_add_u32 v30, v31, 2, v30')
    A(f's_lshl_b32 s{sT}, s{sH}, 8')
    A(f's_and_b32 s{sT+1}, s{sW}, 1')
    A(f's_lshl_b32 s{sT+1}, s{sT+1}, 7')
    A(f's_add_u32 s{sT}, s{sT}, s{sT+1}')
    A(f'v_add_u32 v{vMst}, s{sT}, v30')
    for r in range(4): A(f'v_mov_b32 v{ONE + r}, 0x3f803f80')
    A(f's_mov_b32 s{sC}, {hex(f32bits(SM_SCALE_LOG2E))}')
    A(f's_mov_b32 s{sEX}, 0x00ff00ff')
    A(f's_mov_b32 s{sEX+1}, 0x00ff00ff')

def smf(A, acc, a, b):
    A(f'v_smfmac_f32_16x16x64_bf16 {v(acc,4)}, {v(a,4)}, {b}, v{vIDX}')
def Qm(A, ft, c): smf(A, accQ + 4 * ft, mA[c], a_((ft * 8 + c) * 8, 8))
def Km(A, ft, c): smf(A, accK + 4 * ft, mA[c], a_(128 + (ft * 8 + c) * 8, 8))
def Vm(A, ft, c):
    b = VSBUF[VSTREAM.index((ft, c))] if (ft, c) in VSTREAM else wv_home(ft, c)
    smf(A, accV + 4 * ft, mA[c], v(b, 8))

def initial_bases(A):
    A(f's_lshl_b32 s{sT+1}, s{sB}, 20')
    A(f's_add_u32 s{sT+1}, s{sT+1}, {WS_PR}')
    add64(A, sP0[0], sWS, f's{sT+1}')
    for k in range(3):
        if k: add64(A, sP0[k], sP0[0], k * 262144)
        add64(A, sP1[k], sP0[k], 32768)
        add64(A, sPr[k], sP0[k], 4096)
    A(f's_lshl_b32 s{sT+1}, s{sB}, 15')
    A(f's_add_u32 s{sT+1}, s{sT+1}, {WS_MR}')
    add64(A, sM[0], sWS, f's{sT+1}')
    add64(A, sM[1], sM[0], 8192)
    add64(A, sM[2], sM[0], 16384)
    A(f's_lshl_b32 s{sT}, s{sB}, 11')
    A(f's_add_u32 s{sT}, s{sT}, s{sH}')
    A(f's_lshl_b32 s{sT+1}, s{sT}, 14')
    A(f's_lshl_b32 s{sT+2}, s{sW}, 12')
    A(f's_add_u32 s{sT+1}, s{sT+1}, s{sT+2}')
    add64(A, sKV, sWS, f's{sT+1}')
    A(f's_lshl_b32 s{sT}, s{sT}, 13')
    A(f's_add_u32 s{sT}, s{sT}, {WS_KM}')
    A(f's_lshl_b32 s{sT+1}, s{sW}, 10')
    A(f's_add_u32 s{sT}, s{sT}, s{sT+1}')
    add64(A, sKMk, sWS, f's{sT}')

def timeout_check(A, lfail):
    A(f's_sub_u32 s{sTO}, s{sTO}, 1')
    A(f's_cbranch_scc1 {lfail}')

NST = 10
def stamp(A, opt, i, hop=None):
    if opt.get('hopst'):
        if hop is None: return
        i = hop
    elif i is None: return
    if opt.get('stamps'): A(f"{'s_memrealtime' if opt.get('rt') else 's_memtime'} s[{78 + 2*i}:{79 + 2*i}]")
def stamp_accum(A, opt):
    if opt.get('stamps'):
        A('s_waitcnt lgkmcnt(0)')
        if opt.get('rawstep') is not None:
            l = A.label('noraw')
            A(f's_cmp_eq_u32 s{sStep}, {opt["rawstep"] + 1}')
            A(f's_cbranch_scc0 {l}')
            A(f's_lshl_b32 s{sT}, s{sB}, 5'); A(f's_add_u32 s{sT}, s{sT}, s{sH}')
            A(f's_lshl_b32 s{sT}, s{sT}, 2'); A(f's_add_u32 s{sT}, s{sT}, s{sW}')
            A(f's_lshl_b32 s{sT}, s{sT}, 6'); A(f's_add_u32 s{sT}, s{sT}, 0x06600000')
            A(f'v_mov_b32 v{vT0}, s{sT}')
            for i in range(NST):
                A(f'v_mov_b32 v{vT1}, s{78 + 2*i}')
                A(f'global_store_dword v{vT0}, v{vT1}, s[{sWS}:{sWS+1}] offset:{4*i}')
            A(f'{l}:')
        for i in range(NST - 1):
            A(f's_sub_u32 s{sT}, s{78 + 2*(i+1)}, s{78 + 2*i}')
            A(f's_add_u32 s{60 + i}, s{60 + i}, s{sT}')

class Lds:
    def __init__(self, A): self.A = A; self.q = []; self.done = -1
    def op(self, tag, ins): self.A(ins); self.q.append(tag)
    def mk(self, tag, ins): return lambda: self.op(tag, ins)
    def wait_ins(self, tags):
        last = max(len(self.q) - 1 - self.q[::-1].index(t) for t in tags)
        if last <= self.done: return None
        self.done = last
        n = len(self.q) - 1 - last
        assert n <= 15, n
        return f's_waitcnt lgkmcnt({n})'
    def need(self, *tags):
        w = self.wait_ins(tags)
        if w: self.A(w)
    def mkneed(self, *tags): return lambda: self.need(*tags)
    def drain(self): self.A('s_waitcnt lgkmcnt(0)'); self.done = len(self.q) - 1

def chain_role(A, opt):
    integ = opt.get('integ', 0)
    assert not (integ and opt.get('stamps'))
    K = {'Wq': 60, 'Wk': 62, 'Wv': 64, 'Wo': 66, 'mem0': 68}
    A('L_chain:')
    A(f's_mul_i32 s{sT}, s{sB}, 56')
    A(f's_add_u32 s{sA}, s0, s{sT}')
    A(f's_addc_u32 s{sA+1}, s1, 0')
    A(f's_load_dwordx2 s[{K["mem0"]}:{K["mem0"]+1}], s[{sA}:{sA+1}], 8')
    A(f's_load_dwordx4 s[60:63], s[{sA}:{sA+1}], 16')
    A(f's_load_dwordx4 s[64:67], s[{sA}:{sA+1}], 32')
    A('s_waitcnt lgkmcnt(0)')
    A(f's_lshl_b32 s{sT}, s{sH}, 8')
    for m in ['Wq', 'Wk', 'Wv']: add64(A, K[m], K[m], f's{sT}')
    A(f's_lshl_b32 s{sT}, s{sH}, 17')
    add64(A, K['Wo'], K['Wo'], f's{sT}')
    chain_setup_persistent(A)
    A(f's_mov_b32 s{sStep}, 0')
    A(f's_mov_b32 s{sTag}, 0')
    initial_bases(A)
    A.c('poison both partial slots and all four mem slots')
    for r in range(32, 36): A(f'v_mov_b32 v{r}, -1')
    for k in range(3):
        A(f'global_store_dwordx4 v{vPst}, v[32:35], s[{sP0[k]}:{sP0[k]+1}]')
        A(f'global_store_dwordx4 v{vPst}, v[32:35], s[{sP1[k]}:{sP1[k]+1}]')
    A(f's_mov_b64 exec, s[{sEX}:{sEX+1}]')
    for k in range(3):
        A(f'global_store_dword v{vMst}, v32, s[{sM[k]}:{sM[k]+1}]')
    A('s_mov_b64 exec, -1')
    if integ:
        A(f's_lshl_b32 s{sT}, s{sB}, 5'); A(f's_add_u32 s{sT}, s{sT}, s{sH}'); A(f's_lshl_b32 s{sT}, s{sT}, 6')
        A(f's_add_u32 s{sT}, s{sT}, {WS_FLM}')
        A(f'v_mov_b32 v30, s{sT}'); A('v_mov_b32 v31, 0')
        A(f'global_store_dword v30, v31, s[{sWS}:{sWS+1}] sc1')
    A('s_waitcnt vmcnt(0)')
    A('s_barrier')
    A(f's_cmp_lg_u32 s{sW}, 0')
    l = A.label('noann'); A(f's_cbranch_scc1 {l}')
    A(f's_lshl_b32 s{sT}, s{sB}, 2')
    A(f's_add_u32 s{sT}, s{sT}, 32')
    A(f'v_mov_b32 v30, s{sT}')
    A('v_mov_b32 v31, 1')
    A('s_mov_b64 exec, 1')
    A(f'global_atomic_add v30, v31, s[{sDBG}:{sDBG+1}] sc1')
    A('s_mov_b64 exec, -1')
    A(f'{l}:')
    lend = A.label('wdone')
    labs = [A.label(f'w{w}') for w in range(4)]
    for w in range(1, 4):
        A(f's_cmp_eq_u32 s{sW}, {w}')
        A(f's_cbranch_scc1 {labs[w]}')
    for w in range(4):
        A(f'{labs[w]}:')
        chain_startup_weights(A, w, K, opt.get('cnt', 'nt'))
        if w < 3: A(f's_branch {lend}')
    A(f'{lend}:')
    A('s_barrier')
    to = dict(opt); to['tracev'] = ('v30', 'v31')
    trace(A, to, 1)
    A('v_mov_b64 v[32:33], 0'); A('v_mov_b64 v[34:35], 0')
    A(f'ds_write_b128 v{vL16}, v[32:35] offset:{L_ZERO}')
    def kv_m0():
        A(f's_lshl_b32 s{sT}, s{sW}, 12')
        A(f's_add_u32 m0, s{sT}, s{sKVL}')
    def kv_dma(i): A(f'global_load_lds_dwordx4 v{vL16}, s[{sKV}:{sKV+1}] offset:{1024 * i} sc1')
    lw = A.label('clr')
    if integ:
        A(f'v_and_b32 v30, 7, v0'); A('v_lshlrev_b32 v30, 2, v30'); A('v_add_u32 v30, 32, v30')
    else:
        A(f's_lshl_b32 s{sT}, s{sB}, 2'); A(f's_add_u32 s{sT}, s{sT}, 32'); A(f'v_mov_b32 v30, s{sT}')
    A(f'{lw}:')
    A(f'global_load_dword v31, v30, s[{sDBG}:{sDBG+1}] sc1')
    A('s_waitcnt vmcnt(0)')
    A('v_cmp_gt_u32 vcc, 32, v31')
    timeout_check(A, 'L_fail')
    A(f's_cbranch_vccnz {lw}')
    if integ:
        A(f's_lshl_b32 s{sT}, s{sB}, 5'); A(f's_add_u32 s{sT}, s{sT}, s{sH}')
        A(f's_lshl_b32 s{sT+1}, s{sT}, 4'); A(f's_add_u32 s{sT+1}, s{sT+1}, {WS_FLK}'); add64(A, sFLK, sWS, f's{sT+1}')
        A(f's_lshl_b32 s{sT+1}, s{sT}, 6'); A(f's_add_u32 s{sT+1}, s{sT+1}, {WS_FLM}'); add64(A, sFLM, sWS, f's{sT+1}')
        A(f's_cmp_eq_u32 s{sW}, 3'); A(f's_cselect_b32 s{sFE}, 1, 0'); A(f's_mov_b32 s{sFE+1}, 0')
        A(f's_mov_b32 s{sNeed}, 1')
        lw = A.label('p1first')
        A(f'{lw}:')
        A('s_mov_b64 exec, 1')
        A(f'global_load_dword v31, v{vL16}, s[{sFLK}:{sFLK+1}] sc1')
        A('s_waitcnt vmcnt(0)')
        A('v_cmp_gt_u32 vcc, 1, v31')
        A('s_mov_b64 exec, -1')
        timeout_check(A, 'L_fail')
        A(f's_cbranch_vccnz {lw}')
        A('s_mov_b64 exec, 1')
        A(f'global_load_dword v{vFlag}, v{vL16}, s[{sFLK}:{sFLK+1}] offset:4 sc1')
        A('s_mov_b64 exec, -1')
    A(f's_mov_b32 s{sKVL}, {L_KV0}')
    kv_m0(); A('s_nop 0')
    for i in range(4): kv_dma(i)
    add64(A, sKV, sKV, 32 * 16384)
    A(f's_mov_b32 s{sKVL}, {L_KV1}')
    A('v_bfe_u32 v30, v0, 2, 2')
    A('v_and_b32 v31, 1, v0')
    A('v_lshl_add_u32 v30, v30, 1, v31')
    A('v_lshlrev_b32 v30, 10, v30')
    A('v_bfe_u32 v31, v0, 1, 1')
    A('v_lshl_add_u32 v30, v31, 6, v30')
    A('v_lshrrev_b32 v31, 4, v0')
    A('v_lshl_add_u32 v30, v31, 3, v30')
    A(f's_lshl_b32 s{sT}, s{sW}, 8')
    A(f'v_add_u32 v30, s{sT}, v30')
    m0 = K['mem0']
    A(f'global_load_dwordx2 v[32:33], v30, s[{m0}:{m0+1}]')
    A(f'global_load_dwordx2 v[34:35], v30, s[{m0}:{m0+1}] offset:32')
    A(f'global_load_dwordx2 v[36:37], v30, s[{m0}:{m0+1}] offset:128')
    A(f'global_load_dwordx2 v[38:39], v30, s[{m0}:{m0+1}] offset:160')
    A(f's_lshl_b32 s{sT}, s{sW}, 13')
    A(f's_add_u32 s{sT}, s{sT}, {L_VL}')
    A(f'v_add_u32 v{vVL}, s{sT}, v{vL16}')

    def seq(mf, fill):
        for i, m in enumerate(mf):
            m()
            ins = fill.get(i, [])
            for x in ins:
                if callable(x): x()
                else: A(x)
    def put(fill, slot, *ins): fill.setdefault(slot, []).extend(ins)
    Q = lambda ft, c: (lambda: Qm(A, ft, c))
    Kx = lambda ft, c: (lambda: Km(A, ft, c))
    V = lambda ft, c: (lambda: Vm(A, ft, c))
    def post_ops(acc, ft, dst):
        b = acc + 4 * ft
        return [f'v_add_f32 v{b}, v{b}, v{b+2}', f'v_add_f32 v{b+1}, v{b+1}, v{b+3}', f'v_cvt_pk_bf16_f32 v{dst}, v{b}, v{b+1}']
    for r in range(accQ, accQ + 24, 2): A(f'v_mov_b64 {v(r,2)}, 0')
    A('s_waitcnt vmcnt(0)')
    to = dict(opt); to['tracev'] = ('v30', 'v31')
    trace(A, to, 2)
    if opt.get('timing'):
        A('s_memtime s[70:71]'); A('s_memrealtime s[74:75]'); A('s_waitcnt lgkmcnt(0)')
    if opt.get('stamps'):
        for i in range(NST): A(f's_mov_b32 s{60 + i}, 0')
        A('s_mov_b32 s98, 0'); A('s_mov_b32 s99, 0')
    def delay(n):
        while n > 0:
            k = min(n, 4); A(f's_nop {4 * k - 1}'); n -= k
    KP = 96
    vm = [76, 78]
    slow = []

    def front(last, L, u=0):
        L.op('mw0', f'ds_write_b128 v{vM[0]}, {v(mA[0],4)}')
        L.op('mw1', f'ds_write_b128 v{vM[0]}, {v(mA[1],4)} offset:1024')
        if last: seq([Kx(0,0), Kx(1,0), Kx(0,1), Kx(1,1), V(0,0)], {})
        else: seq([Q(0,0), Q(1,0), Q(0,1), Q(1,1), Kx(0,0)], {})
        L.drain()
        A('s_barrier')
        stamp(A, opt, 1)
        if not last: cut(1)
        rd = []
        for i in range(1, 4):
            rd.append(L.mk(('m', 2*i), f'ds_read_b128 {v(mA[2*i],4)}, v{vM[i]}'))
            rd.append(L.mk(('m', 2*i+1), f'ds_read_b128 {v(mA[2*i+1],4)}, v{vM[i]} offset:1024'))
        vs = []
        for i in range(4):
            vs.append(L.mk(('vs', i, 0), f'ds_read_b128 {v(VSBUF[i],4)}, v{vVL} offset:{i * 2048}'))
            vs.append(L.mk(('vs', i, 1), f'ds_read_b128 {v(VSBUF[i]+4,4)}, v{vVL} offset:{i * 2048 + 1024}'))
        order = [(0,2), (1,2), (0,3), (1,3)] + [(ft, c) for c in range(4, 8) for ft in range(2)]
        rd[0](); rd[1]()
        if last:
            for x in rd[2:]: x()
            seq([V(1,0), V(0,1), V(1,1)], {})
            for x in vs: x()
            L.need(('m', 7))
            seq([Kx(ft, c) for c in range(2, 8) for ft in range(2)], {})
            L.drain()
            p0 = post_ops(accK, 0, vPub); p1 = post_ops(accK, 1, vPub + 1)
            seq([V(ft, c) for ft, c in order], {1: p0, 2: p1})
            return
        seq([Kx(1,0), Kx(0,1), Kx(1,1), V(0,0), V(1,0), V(0,1), V(1,1)], {0: [rd[2]], 1: [rd[3]], 2: [rd[4]], 3: [rd[5]]})
        f = {}
        L.need(('m', 2))
        for c in range(3, 8): put(f, 2 * (c - 2) - 1, L.mkneed(('m', c)))
        put(f, 0, kv_m0)
        if integ:
            def p1_check():
                lslow = A.label('p1slow'); lback = A.label('p1ok')
                A(f'v_readfirstlane_b32 s{sT+1}, v{vFlag}')
                if u == 2: A(f's_add_u32 s{sT+2}, s{sNeed}, 1')
                else: A(f's_mov_b32 s{sT+2}, s{sNeed}')
                A(f's_cmp_lt_u32 s{sT+1}, s{sT+2}')
                A(f's_cbranch_scc1 {lslow}')
                A(f'{lback}:')
                slow.append((lslow, lback, (u + 1) % 3))
            put(f, 1, p1_check)
            put(f, 9, 's_mov_b64 exec, 1', f'global_load_dword v{vFlag}, v{vL16}, s[{sFLK}:{sFLK+1}] offset:{4 * ((u + 2) % 3)} sc1', 's_mov_b64 exec, -1')
            put(f, 3, f'v_mov_b32 v{vT0}, s{sStep}')
            put(f, 5, f's_mov_b64 exec, s[{sFE}:{sFE+1}]', f'global_store_dword v{vL16}, v{vT0}, s[{sFLM}:{sFLM+1}] sc1', 's_mov_b64 exec, -1')
        if not opt.get('nodma'):
            for i in range(4): put(f, 2 + 2 * i, (lambda i=i: kv_dma(i)))
        put(f, 10, f's_add_u32 s{sKV}, s{sKV}, {32 * 16384}', f's_addc_u32 s{sKV+1}, s{sKV+1}, 0')
        put(f, 11, f's_xor_b32 s{sKVL}, s{sKVL}, {L_KV0 ^ L_KV1}')
        seq([Q(ft, c) for c in range(2, 8) for ft in range(2)], f)
        f = {}
        qr = [L.mk(('q', ks, jj), f'ds_read_b64_tr_b16 {v(qf[ks] + 2*jj, 2)}, v{vQr} offset:{ks * 512 + jj * 128}') for ks in range(4) for jj in range(2)]
        p0 = post_ops(accQ, 0, vT0); p1 = post_ops(accQ, 1, vT1)
        put(f, 0, p0[0], p0[1]); put(f, 1, p0[2], L.mk('qw0', f'ds_write_b32 v{vQw}, v{vT0}'), p1[0])
        put(f, 2, p1[1], p1[2], L.mk('qw1', f'ds_write_b32 v{vQw}, v{vT1} offset:256'))
        put(f, 3, vs[0]); put(f, 4, vs[1]); put(f, 5, vs[2]); put(f, 6, vs[3])
        put(f, 7, L.mkneed('qw1'), 's_barrier')
        put(f, 8, qr[0], vs[4]); put(f, 9, qr[1], vs[5]); put(f, 10, qr[2], vs[6]); put(f, 11, qr[3], vs[7])
        seq([Kx(ft, c) for c in range(2, 8) for ft in range(2)], f)
        stamp(A, opt, 2)
        cut(2)
        f = {}
        kxr = lambda c: L.mk(('kx', c), f'ds_read_b128 {v(mA[c],4)}, v{vKX} offset:{1024 * c}')
        p0 = post_ops(accK, 0, vPub); p1 = post_ops(accK, 1, vPub + 1)
        L.need(('vs', 1, 1))
        put(f, 0, qr[4], p0[0]); put(f, 1, qr[5], p0[1], L.mkneed(('vs', 2, 1)))
        put(f, 2, p0[2], L.mk('kw0', f'ds_write_b32 v{vKw}, v{vPub}'), L.mkneed(('vs', 3, 1)))
        put(f, 3, qr[6], p1[0]); put(f, 4, qr[7], p1[1], kxr(2))
        put(f, 5, p1[2], L.mk('kw1', f'ds_write_b32 v{vKw}, v{vPub+1} offset:512'), kxr(3))
        put(f, 6, kxr(0), kxr(1)); put(f, 7, kxr(4)); put(f, 8, kxr(5)); put(f, 10, kxr(6)); put(f, 11, kxr(7))
        seq([V(ft, c) for ft, c in order], f)
        stamp(A, opt, 3)
        cut(3)

    def wo_fetch_ops(t, ks2, buf):
        base = vWoB if ks2 else vWoA
        i = TL.index(t)
        return [f'ds_read_b128 {v(buf,4)}, v{base} offset:{i*2048}', f'ds_read_b128 {v(buf+4,4)}, v{base} offset:{i*2048+1024}']

    class Cut(Exception): pass
    def cut(k):
        if opt.get('cut') == k:
            A('s_waitcnt lgkmcnt(0)')
            for r in range(64, 88, 2): A(f'v_mov_b64 {v(r,2)}, 0')
            A(f's_add_u32 s{sStep}, s{sStep}, 1')
            A('s_barrier')
            raise Cut()
    def step(u):
        try: step_(u)
        except Cut: pass
    def step_(u):
        stamp(A, opt, 0)
        if opt.get('dbgmem'):
            A(f's_lshl_b32 s{sT}, s{sB}, 6')
            A(f's_add_u32 s{sT}, s{sT}, s{sStep}')
            A(f's_lshl_b32 s{sT}, s{sT}, 13')
            A(f's_add_u32 s{sT}, s{sT}, {WS_DBGM}')
            add64(A, sA, sWS, f's{sT}')
            A(f'global_store_dwordx4 v{vM[0]}, {v(mA[0],4)}, s[{sA}:{sA+1}]')
            A(f'global_store_dwordx4 v{vM[0]}, {v(mA[1],4)}, s[{sA}:{sA+1}] offset:1024')
        L = Lds(A)
        front(False, L, u)
        L.need('kw1', ('q', 3, 1))
        A('s_barrier')
        kr = [L.mk(('k', ks, jj), f'ds_read_b64_tr_b16 {v(kf[ks] + 2*jj, 2)}, v{vKr} offset:{ks * 1024 + jj * 256}') for ks in range(4) for jj in range(2)]
        def Sxm(i):
            kt, ks = i >> 2, i & 3
            c = '0' if i in (2, 4) else v(Sx[kt], 4)
            return lambda: A(f'v_mfma_f32_16x16x32_bf16 {v(Sx[kt],4)}, {v(mA[i],4)}, {v(qf[ks],4)}, {c}')
        def Smm(ks):
            c = '0' if ks == 0 else v(Sm, 4)
            return lambda: A(f'v_mfma_f32_16x16x32_bf16 {v(Sm,4)}, {v(kf[ks],4)}, {v(qf[ks],4)}, {c}')
        f = {}
        xo = [2, 3, 0, 1, 4, 5, 6, 7]
        kr[0](); kr[1]()
        L.need(('kx', 3))
        for i in range(6): put(f, i, kr[2 + i])
        for i in range(1, 7): put(f, i, L.mkneed(('kx', xo[i + 1])))
        vxf = [40, 44]
        put(f, 6, L.mk('vx0', f'ds_read_b128 {v(vxf[0],4)}, v{vVX}'))
        put(f, 7, L.mk('vx1', f'ds_read_b128 {v(vxf[1],4)}, v{vVX} offset:1024'), L.mkneed(('k', 0, 1)))
        seq([Sxm(i) for i in xo], f)
        WB = [48, 56, 32, 40, 104, 88]
        wacc = [72, 76, 80, 96, 100, 104, 108, 88]
        f = {}
        pv0 = post_ops(accV, 0, vT0); pv1 = post_ops(accV, 1, vT1)
        put(f, 0, pv0[0], pv0[1], L.mkneed(('k', 1, 1)))
        put(f, 1, pv0[2], pv1[0], L.mkneed(('k', 2, 1)))
        put(f, 2, pv1[1], pv1[2], L.mkneed(('k', 3, 1)))
        if not opt.get('nopub'): put(f, 3, f'global_store_dwordx4 v{vL16}, {v(vPub,4)}, s[{sKMk}:{sKMk+1}] sc1')
        seq([Smm(ks) for ks in range(4)], f)
        A(f'v_mov_b32 v{vm[0]}, v{vT0}'); A(f'v_mov_b32 v{vm[0]+1}, 0')
        A(f'v_mov_b32 v{vm[1]}, v{vT1}'); A(f'v_mov_b32 v{vm[1]+1}, 0')
        w0 = wo_fetch_ops(0, 0, WB[0]); w1 = wo_fetch_ops(0, 1, WB[1]); w2 = wo_fetch_ops(1, 0, WB[2])
        A(w0[0]); A(w0[1])
        stamp(A, opt, 4)
        cut(4)
        sx = [Sx[0] + r for r in range(4)] + [Sx[1] + r for r in range(4)]
        A(f'v_max3_f32 v{vT0}, v{sx[0]}, v{sx[1]}, v{sx[2]}')
        A(f'v_max3_f32 v{vT1}, v{sx[3]}, v{sx[4]}, v{sx[5]}')
        A(f'v_max3_f32 v{vT0}, v{vT0}, v{sx[6]}, v{sx[7]}')
        A(f'v_max3_f32 v{vT0}, v{vT0}, v{Sm}, v{Sm+1}')
        A(f'v_max_f32 v{vT0}, v{vT0}, v{vT1}')
        A(f'v_mov_b32 v{vT1}, v{vT0}')
        A(w1[0]); A(w1[1])
        A(f'v_permlane16_swap_b32 v{vT0}, v{vT1}')
        A(f'v_max_f32 v{vT0}, v{vT0}, v{vT1}')
        A(f'v_mov_b32 v{vT1}, v{vT0}')
        A(w2[0]); A(w2[1])
        A(f'v_permlane32_swap_b32 v{vT0}, v{vT1}')
        A(f'v_max_f32 v{vT0}, v{vT0}, v{vT1}')
        A(f'v_mul_f32 v{vT0}, s{sC}, v{vT0}')
        if opt.get('pk', 1):
            for r in [Sx[0], Sx[0] + 2, Sx[1], Sx[1] + 2, Sm]:
                A(f'v_pk_fma_f32 {v(r,2)}, {v(r,2)}, s[{sC}:{sC+1}], {v(vT0,2)} op_sel_hi:[1,0,0] neg_lo:[0,0,1] neg_hi:[0,0,1]')
        else:
            for r in sx + [Sm, Sm + 1]: A(f'v_fma_f32 v{r}, v{r}, s{sC}, -v{vT0}')
        Px, Pm = 88, 92
        for r in sx + [Sm, Sm + 1]: A(f'v_exp_f32 v{r}, v{r}')
        A(f'v_mov_b32 v{Pm+1}, 0')
        A(f'v_cvt_pk_bf16_f32 v{Px}, v{sx[0]}, v{sx[1]}')
        A(f'v_cvt_pk_bf16_f32 v{Px+1}, v{sx[2]}, v{sx[3]}')
        A(f'v_cvt_pk_bf16_f32 v{Px+2}, v{sx[4]}, v{sx[5]}')
        A(f'v_cvt_pk_bf16_f32 v{Px+3}, v{sx[6]}, v{sx[7]}')
        A(f'v_cvt_pk_bf16_f32 v{Pm}, v{Sm}, v{Sm+1}')
        cut(5)
        oacc = [64, 68]; lacc = 72
        A('s_waitcnt lgkmcnt(6)')
        w3 = wo_fetch_ops(1, 1, WB[3]); w4 = wo_fetch_ops(2, 0, WB[4]); w5 = wo_fetch_ops(2, 1, WB[5])
        A(f'v_mfma_f32_16x16x32_bf16 {v(lacc,4)}, {v(ONE,4)}, {v(Px,4)}, 0')
        for ft in range(2):
            A(f'v_mfma_f32_16x16x32_bf16 {v(oacc[ft],4)}, {v(vxf[ft],4)}, {v(Px,4)}, 0')
            A(w4[ft])
        A(f'v_mfma_f32_16x16x16_bf16 {v(lacc,4)}, {v(ONE,2)}, {v(Pm,2)}, {v(lacc,4)}')
        for ft in range(2):
            A(f'v_mfma_f32_16x16x16_bf16 {v(oacc[ft],4)}, {v(vm[ft],2)}, {v(Pm,2)}, {v(oacc[ft],4)}')
            A(w3[ft])
        A('s_nop 1')
        A(f'v_rcp_f32 v{vT0}, v{lacc}')
        A(w5[0]); A(w5[1])
        A('s_nop 3')
        for r in range(4): A(f'v_cndmask_b32 v{64 + r}, v{68 + r}, v{64 + r}, s[{sEX}:{sEX+1}]')
        for r in range(0, 4, 2): A(f'v_pk_mul_f32 {v(64 + r, 2)}, {v(64 + r, 2)}, {v(vT0,2)} op_sel_hi:[1,0]')
        A('v_cvt_pk_bf16_f32 v64, v64, v65')
        A('v_cvt_pk_bf16_f32 v65, v66, v67')
        cut(6)
        A(f'ds_write_b64 v{vOw}, v[64:65]')
        A('s_waitcnt lgkmcnt(0)')
        A('s_barrier')
        stamp(A, opt, 5)
        cut(7)
        of = [64, 68]
        A(f'ds_read_b128 {v(of[0],4)}, v{vL16}')
        A(f'ds_read_b128 {v(of[1],4)}, v{vL16} offset:1024')
        for a0 in wacc[:5]:
            A(f'v_mov_b64 {v(a0,2)}, 0'); A(f'v_mov_b64 {v(a0+2,2)}, 0')
        outr = [84, 28]
        bufof = {(0,0): WB[0], (0,1): WB[1], (1,0): WB[2], (1,1): WB[3], (2,0): WB[4], (2,1): WB[5],
                 (6,0): WB[0], (6,1): WB[1], (7,0): WB[2], (7,1): WB[3]}
        bufof.update(WO_HOME)
        def wo_post_ops(t):
            acc = wacc[t]; o = outr[t >> 2] + (t & 3)
            r = [f'v_add_f32 v{acc}, v{acc}, v{acc+2}', f'v_add_f32 v{acc+1}, v{acc+1}, v{acc+3}', f'v_cvt_pk_bf16_f32 v{o}, v{acc}, v{acc+1}']
            return r
        refill = []
        for (t, ks2) in [(6,0), (6,1), (7,0), (7,1)]:
            for j, x in enumerate(wo_fetch_ops(t, ks2, bufof[(t, ks2)])): refill.append((x, ('w', t, ks2, j)))
        issued = [('o', 0), ('o', 1)]
        done = [-1]
        def need(tags):
            last = max(issued.index(t) for t in tags)
            if last > done[0]:
                A(f's_waitcnt lgkmcnt({len(issued) - 1 - last})')
                done[0] = last
        todo = []
        nref = 0
        for op in range(16):
            t, ks2 = op >> 1, op & 1
            acc = wacc[t]
            req = []
            if op < 2: req.append(('o', op))
            if t >= 6: req += [('w', t, ks2, 0), ('w', t, ks2, 1)]
            if t >= 5 and ks2 == 0: req.append(('z', t))
            if req: need(req)
            A(f'v_smfmac_f32_16x16x64_bf16 {v(acc,4)}, {v(of[ks2],4)}, {v(bufof[(t,ks2)],8)}, v{vIDX}')
            if nref < 8 and (nref >> 1) <= op:
                if 'ds' in opt.get('woskip', ''): A('s_nop 0')
                else: A(refill[nref][0])
                issued.append(refill[nref][1]); nref += 1
            if op in (5, 6, 7):
                A(f'ds_read_b128 {v(wacc[op],4)}, v{vL16} offset:{L_ZERO}'); issued.append(('z', op))
            if ks2 == 1 and t >= 1 and 'valu' not in opt.get('woskip', ''): todo += wo_post_ops(t - 1)
            for _ in range({3: 1, 4: 1}.get(op, 2) if op < 15 else 99):
                if todo: A(todo.pop(0))
            if op == 10:
                for x in todo: A(x)
                todo = []
                A(f'v_and_or_b32 v{outr[0]}, v{outr[0]}, -2, s{sTag}')
                if 'st' not in opt.get('woskip', ''): A(f'global_store_dwordx4 v{vPst}, {v(outr[0],4)}, s[{sP0[u]}:{sP0[u]+1}]')
        A('s_nop 5')
        for x in wo_post_ops(7): A(x)
        A(f'v_and_or_b32 v{outr[1]}, v{outr[1]}, -2, s{sTag}')
        if 'st' not in opt.get('woskip', ''): A(f'global_store_dwordx4 v{vPst}, {v(outr[1],4)}, s[{sP1[u]}:{sP1[u]+1}]')
        stamp(A, opt, 6, 0)
        cut(8)
        if opt.get('nohop'):
            for r in range(64, 88, 2): A(f'v_mov_b64 {v(r,2)}, 0')
            A(f's_add_u32 s{sStep}, s{sStep}, 1')
            A('s_barrier')
            for i in range(7, 10): stamp(A, opt, i)
            stamp_accum(A, opt)
            return
        SEL = 64; RA = [32, 36, 40, 44]; RACC = 68
        lnr = A.label('nored')
        for r in range(72, 88, 2): A(f'v_mov_b64 {v(r,2)}, 0')
        A(f's_cmp_ge_u32 s{sW}, 2'); A(f's_cbranch_scc1 {lnr}')
        def issue1():
            for i in range(4):
                b = sP0[u] if i < 2 else sPr[u]
                A(f'global_load_dwordx4 {v(RA[i],4)}, v{vRed}, s[{b}:{b+1}] offset:{2048 * (i & 1)} sc1')
        A(f'v_bfe_u32 v{vT0}, v{vL16}, 4, 3')
        A(f'v_lshrrev_b32 v{vT1}, 1, v{vT0}')
        A(f'v_and_b32 v{vT0}, 1, v{vT0}')
        A(f'v_lshlrev_b32 v{vT0}, 4, v{vT0}')
        A(f'v_mov_b32 v68, 0x3f80')
        A(f'v_lshlrev_b32 v{vT0}, v{vT0}, v68')
        for d in range(4):
            A(f'v_cmp_eq_u32 vcc, {d}, v{vT1}')
            A('s_nop 1')
            A(f'v_cndmask_b32 v{SEL + d}, 0, v{vT0}, vcc')
        delay(opt.get('d1', 0))
        issue1()
        stamp(A, opt, None, 1)
        lp = A.label('poll1'); lok = A.label('ok1')
        A(f'{lp}:')
        for rnd in range(2):
            for i in range(4):
                A(f's_waitcnt vmcnt({3 - i})')
                if rnd == 0 and i == 0: stamp(A, opt, None, 2)
                c = '0' if i == 0 else v(RACC, 4)
                A(f'v_mfma_f32_16x16x32_bf16 {v(RACC,4)}, {v(RA[i],4)}, {v(SEL,4)}, {c}')
                if i == 0: A(f'v_xor_b32 v{vT0}, s{sTag}, v{RA[0]}')
                else: A(f'v_bitop3_b32 v{vT0}, v{vT0}, v{RA[i]}, s{sTag} bitop3:0xf6')
            A(f'v_and_b32 v{vT0}, 1, v{vT0}')
            A(f'v_cmp_ne_u32 vcc, 0, v{vT0}')
            if rnd == 0: stamp(A, opt, None, 3)
            if opt.get('stamps'): A('s_add_u32 s98, s98, 1')
            A(f's_cbranch_vccz {lok}')
            issue1()
        timeout_check(A, 'L_fail')
        A(f's_branch {lp}')
        A(f'{lok}:')
        A('s_nop 5')
        A(f'v_add_f32 v{RACC}, v{RACC}, v{RACC+1}')
        A(f'v_add_f32 v{RACC+2}, v{RACC+2}, v{RACC+3}')
        A(f'v_cvt_pk_bf16_f32 v{vT0}, v{RACC}, v{RACC+2}')
        A(f'v_min_u32 v{vT0}, -2, v{vT0}')
        A(f's_mov_b64 exec, s[{sEX}:{sEX+1}]')
        mr = sM[(u + 1) % 3]; mp = sM[(u + 2) % 3]
        A(f'global_store_dword v{vMst}, v{vT0}, s[{mr}:{mr+1}]')
        A(f'v_mov_b32 v{vT1}, -1')
        A(f'global_store_dword v{vMst}, v{vT1}, s[{mp}:{mp+1}]')
        A('s_mov_b64 exec, -1')
        A(f'{lnr}:')
        stamp(A, opt, 7, 5)
        stamp(A, opt, 8, 6)
        def pollA():
            A(f'global_load_dwordx4 {v(mA[0],4)}, v{vM[0]}, s[{mr}:{mr+1}] sc1')
            A(f'global_load_dwordx4 {v(mA[1],4)}, v{vM[0]}, s[{mr}:{mr+1}] offset:1024 sc1')
        A('s_barrier')
        for r in range(64, 72, 2): A(f'v_mov_b64 {v(r,2)}, 0')
        delay(opt.get('d2', 0))
        pollA()
        A(f's_add_u32 s{sStep}, s{sStep}, 1')
        A(f'v_xor_b32 v{vKX}, {L_KV0 ^ L_KV1}, v{vKX}')
        A(f'v_xor_b32 v{vVX}, {L_KV0 ^ L_KV1}, v{vVX}')
        add64(A, sKMk, sKMk, 32 * 8192)
        stamp(A, opt, None, 7)
        lA = A.label('chkA'); lgo = A.label('go')
        A(f'{lA}:')
        for rnd in range(3):
            A('s_waitcnt vmcnt(0)')
            A(f'v_max3_u32 v{vT0}, v32, v34, v36')
            A(f'v_max_u32 v{vT0}, v{vT0}, v38')
            A(f'v_cmp_eq_u32 vcc, -1, v{vT0}')
            if rnd == 0: stamp(A, opt, None, 8)
            A(f's_cbranch_vccz {lgo}')
            if opt.get('stamps'): A('s_add_u32 s99, s99, 1')
            pollA()
        timeout_check(A, 'L_fail')
        A(f's_branch {lA}')
        A(f'{lgo}:')
        stamp(A, opt, 9, 9)
        stamp_accum(A, opt)

    A('.p2align 6')
    A('L_step:')
    for u in range(3): step(u)
    A(f's_xor_b32 s{sTag}, s{sTag}, 1')
    if integ: A(f's_add_u32 s{sNeed}, s{sNeed}, 1')
    A(f's_cmp_lt_u32 s{sStep}, 63')
    A('s_cbranch_scc1 L_step')
    if opt.get('dbgmem'):
        A(f's_lshl_b32 s{sT}, s{sB}, 6')
        A(f's_add_u32 s{sT}, s{sT}, s{sStep}')
        A(f's_lshl_b32 s{sT}, s{sT}, 13')
        A(f's_add_u32 s{sT}, s{sT}, {WS_DBGM}')
        add64(A, sA, sWS, f's{sT}')
        A(f'global_store_dwordx4 v{vM[0]}, {v(mA[0],4)}, s[{sA}:{sA+1}]')
        A(f'global_store_dwordx4 v{vM[0]}, {v(mA[1],4)}, s[{sA}:{sA+1}] offset:1024')
    trace(A, to, 3)
    front(True, Lds(A))
    A('s_nop 7')
    pv0 = post_ops(accV, 0, vT0); pv1 = post_ops(accV, 1, vT1)
    for x in pv0 + pv1: A(x)
    if integ:
        A(f'v_mov_b32 v30, s{sStep}')
        A(f's_mov_b64 exec, s[{sFE}:{sFE+1}]'); A(f'global_store_dword v{vL16}, v30, s[{sFLM}:{sFLM+1}] sc1'); A('s_mov_b64 exec, -1')
    A(f'global_store_dwordx4 v{vL16}, {v(vPub,4)}, s[{sKMk}:{sKMk+1}] sc1')
    A('s_waitcnt vmcnt(0)')
    if integ:
        A('s_barrier')
        A('v_mov_b32 v30, 64')
        A(f's_mov_b64 exec, s[{sFE}:{sFE+1}]'); A(f'global_store_dword v{vL16}, v30, s[{sFLM}:{sFLM+1}] sc1'); A('s_mov_b64 exec, -1')
        A('s_waitcnt vmcnt(0)')
    trace(A, to, 4)
    if opt.get('timing'):
        A('s_memtime s[72:73]'); A('s_memrealtime s[76:77]'); A('s_waitcnt lgkmcnt(0)')
        A('s_sub_u32 s72, s72, s70'); A('s_sub_u32 s76, s76, s74')
        A('v_mov_b32 v32, s72'); A('v_mov_b32 v33, s76')
        A(f'v_mov_b32 v34, s{sTO}'); A('v_mov_b32 v35, s74')
        A(f's_lshl_b32 s{sT}, s{sB}, 5'); A(f's_add_u32 s{sT}, s{sT}, s{sH}')
        A(f's_lshl_b32 s{sT}, s{sT}, 2'); A(f's_add_u32 s{sT}, s{sT}, s{sW}')
        A(f's_lshl_b32 s{sT}, s{sT}, 4'); A(f's_add_u32 s{sT}, s{sT}, 0x06400000')
        A(f'v_mov_b32 v30, s{sT}')
        A('s_mov_b64 exec, 1')
        A(f'global_store_dwordx4 v30, v[32:35], s[{sWS}:{sWS+1}]')
        if opt.get('stamps'):
            A(f's_lshl_b32 s{sT}, s{sT}, 2')
            A(f's_and_b32 s{sT}, s{sT}, 0xffff')
            A(f's_add_u32 s{sT}, s{sT}, 0x06500000')
            A(f'v_mov_b32 v30, s{sT}')
            A('s_mov_b32 s70, s98'); A('s_mov_b32 s71, s99')
            for q in range(3):
                for r in range(4): A(f'v_mov_b32 v{32 + r}, s{60 + 4*q + r}')
                A(f'global_store_dwordx4 v30, v[32:35], s[{sWS}:{sWS+1}] offset:{16*q}')
                A('s_nop 1')
        A('s_waitcnt vmcnt(0)')
    A('s_endpgm')
    for lslow, lback, r in slow:
        A(f'{lslow}:')
        A('s_mov_b64 exec, 1')
        A(f'global_load_dword v{vFlag}, v{vL16}, s[{sFLK}:{sFLK+1}] offset:{4 * r} sc1')
        A('s_mov_b64 exec, -1')
        A('s_waitcnt vmcnt(0)')
        A(f'v_readfirstlane_b32 s{sT+1}, v{vFlag}')
        timeout_check(A, 'L_fail')
        A(f's_cmp_lt_u32 s{sT+1}, s{sT+2}')
        A(f's_cbranch_scc1 {lslow}')
        A(f's_branch {lback}')
```

```python
from asmlib import *
from chain import (WS_KV, WS_KM, sWS, sDBG, sW, sH, sB, sTO, add64, timeout_check, f32bits, Lds, SM_SCALE_LOG2E)

WS_FLK = 0x07000000
WS_FLM = 0x07001000
WS_FLR = 0x07003000
WS_FLA = 0x07004000
WS_G   = 0x07010000
WS_FP  = 0x07100000
WS_AB  = 0x08200000
LW_X0  = 0
LW_X1  = 32768
LW_Q   = 65536
LW_O   = 73728
LW_K   = 81920
LW_STG = 32768
sR = 13
sXCC = 3
sA = 14; sA2 = 16
sX = 18
sSeg = 20
sI = 21
sN = 22
sT = 54
sXL = 23
sKVo = 24
vL16 = 1
vXG = 2
vXR = [4, 5, 6, 7]
vT0, vT1 = 8, 9

def x_setup(A):
    A(f'v_lshlrev_b32 v{vL16}, 4, v0')
    A(f'v_lshrrev_b32 v{vT0}, 3, v0')
    A(f's_lshl_b32 s{sT}, s{sW}, 3')
    A(f'v_add_u32 v{vT0}, s{sT}, v{vT0}')
    A(f'v_bfe_u32 v{vT1}, v{vT0}, 1, 3')
    A(f'v_and_b32 v{vXG}, 7, v0')
    A(f'v_xor_b32 v{vXG}, v{vXG}, v{vT1}')
    A(f'v_lshlrev_b32 v{vXG}, 4, v{vXG}')
    A(f'v_lshl_add_u32 v{vXG}, v{vT0}, 10, v{vXG}')
    A(f'v_and_b32 v{vT0}, 31, v0')
    A(f'v_bfe_u32 v{vT1}, v{vT0}, 1, 3')
    A(f'v_lshrrev_b32 v10, 5, v0')
    A(f'v_xor_b32 v{vT1}, v{vT1}, v10')
    A(f'v_lshlrev_b32 v{vT1}, 4, v{vT1}')
    A(f'v_and_b32 v10, 7, v{vT0}')
    A(f'v_lshl_add_u32 v{vT1}, v10, 7, v{vT1}')
    A(f'v_lshrrev_b32 v10, 3, v{vT0}')
    A(f'v_lshl_add_u32 v{vXR[0]}, v10, 13, v{vT1}')
    for k in range(1, 4): A(f'v_xor_b32 v{vXR[k]}, {32 * k}, v{vXR[0]}')

def x_dma(A, seg_sgpr, lds_base):
    A(f's_lshl_b32 s{sT}, s{seg_sgpr}, 15')
    add64(A, sA, sX, f's{sT}')
    A(f's_lshl_b32 s{sT}, s{sW}, 13')
    A(f's_add_u32 s{sT}, s{sT}, {lds_base}')
    for kc in range(8):
        A(f's_add_u32 m0, s{sT}, {kc * 1024 - kc * 128}')
        A('s_nop 0')
        A(f'global_load_lds_dwordx4 v{vXG}, s[{sA}:{sA+1}] offset:{kc * 128}')

def load_qkv_weights(A, w, srcs, dsts, nt='nt'):
    vG = [12, 13, 14, 15]; vR = 16
    A(f'v_lshrrev_b32 v{vT0}, 4, v0')
    A(f'v_lshlrev_b32 v{vT1}, 2, v{vT0}')
    A(f'v_and_b32 v10, 15, v0')
    A(f'v_xor_b32 v10, v10, v{vT1}')
    A(f'v_lshlrev_b32 v10, 4, v10')
    A(f'v_add_u32 v{vT0}, {16 * w}, v{vT0}')
    A(f'v_lshl_add_u32 v{vG[0]}, v{vT0}, 13, v10')
    for ii in range(1, 4): A(f'v_add_u32 v{vG[ii]}, {ii * 32768}, v{vG[0]}')
    A(f'v_bfe_u32 v{vT0}, v0, 2, 2')
    A(f'v_xor_b32 v{vT1}, {w}, v{vT0}')
    A(f'v_lshlrev_b32 v{vT1}, 6, v{vT1}')
    A(f'v_lshrrev_b32 v10, 5, v0')
    A(f'v_lshl_add_u32 v{vT0}, v10, 3, v{vT0}')
    A(f'v_lshl_add_u32 v{vT1}, v{vT0}, 8, v{vT1}')
    A(f'v_bfe_u32 v10, v0, 4, 1')
    A(f'v_lshl_add_u32 v{vT1}, v10, 5, v{vT1}')
    A(f'v_and_b32 v10, 3, v0')
    A(f'v_lshl_add_u32 v11, v10, 3, v{vT1}')
    def dma(m, c):
        add64(A, sA, srcs[m], c * 64 * 8192)
        for ii in range(4):
            A(f's_mov_b32 m0, {LW_STG + c * 16384 + w * 4096 + ii * 1024}')
            A('s_nop 0')
            A(f'global_load_lds_dwordx4 v{vG[ii]}, s[{sA}:{sA+1}] {nt}')
    for c in range(8): dma(0, c)
    for m in range(len(srcs)):
        for c in range(8):
            left = (7 - c) * 4 if m == len(srcs) - 1 else 28
            A(f's_waitcnt vmcnt({left})')
            A('s_barrier')
            A(f'v_add_u32 v{vR}, {LW_STG + c * 16384}, v11')
            for ksl in range(4):
                for jj in range(2):
                    r = dsts[m] + (4 * c + ksl) * 4 + 2 * jj
                    A(f'ds_read_b64_tr_b16 {a_(r, 2)}, v{vR} offset:{ksl * 4096 + jj * 1024}')
            A('s_waitcnt lgkmcnt(0)')
            A('s_barrier')
            if m + 1 < len(srcs): dma(m + 1, c)

def p1_phase(A, opt):
    K = {'Wk': 60, 'Wv': 62}
    A('L_p1:')
    A(f's_mul_i32 s{sT}, s{sB}, 56')
    A(f's_add_u32 s{sA}, s0, s{sT}')
    A(f's_addc_u32 s{sA+1}, s1, 0')
    A(f's_load_dwordx4 s[60:63], s[{sA}:{sA+1}], 24')
    A(f's_load_dwordx2 s[{sX}:{sX+1}], s[0:1], 0')
    A('s_waitcnt lgkmcnt(0)')
    A(f's_lshl_b32 s{sT}, s{sH}, 8')
    for m in K: add64(A, K[m], K[m], f's{sT}')
    x_setup(A)
    A.c('first x tile into buffer 0 (outside the staging area)')
    A(f's_mov_b32 s{sSeg}, s{sR}')
    x_dma(A, sSeg, LW_X0)
    lend = A.label('p1w'); labs = [A.label(f'p1w{w}') for w in range(4)]
    for w in range(1, 4):
        A(f's_cmp_eq_u32 s{sW}, {w}'); A(f's_cbranch_scc1 {labs[w]}')
    for w in range(4):
        A(f'{labs[w]}:')
        load_qkv_weights(A, w, [K['Wk'], K['Wv']], [0, 128], opt.get('wnt', 'nt'))
        if w < 3: A(f's_branch {lend}')
    A(f'{lend}:')
    to = dict(opt); to['tracev'] = ('v30', 'v31')
    trace(A, to, 1)
    vKs, vVs = 10, 11
    A(f'v_and_b32 v{vT0}, 15, v0')
    A(f'v_lshrrev_b32 v{vT1}, 5, v0')
    A(f'v_lshl_add_u32 v{vT0}, v{vT1}, 4, v{vT0}')
    A(f'v_lshlrev_b32 v{vT0}, 4, v{vT0}')
    A(f'v_bfe_u32 v{vT1}, v0, 4, 1')
    A(f'v_lshl_add_u32 v{vKs}, v{vT1}, 12, v{vT0}')
    A(f's_lshl_b32 s{sT}, s{sW}, 10')
    A(f'v_add_u32 v{vKs}, s{sT}, v{vKs}')
    A(f'v_lshl_add_u32 v{vVs}, v{vT1}, 10, v{vT0}')
    A(f's_lshl_b32 s{sT}, s{sW}, 11')
    A(f's_add_u32 s{sT}, s{sT}, 8192')
    A(f'v_add_u32 v{vVs}, s{sT}, v{vVs}')
    A(f's_cmp_eq_u32 s{sR}, 0')
    A(f's_cselect_b32 s{sN}, 22, 21')
    A(f's_mov_b32 s{sI}, 0')
    A(f's_mov_b32 s{sXL}, {LW_X0}')
    sFl = 26
    A(f's_lshl_b32 s{sT}, s{sB}, 5'); A(f's_add_u32 s{sT}, s{sT}, s{sH}')
    A(f's_lshl_b32 s{sT}, s{sT}, 4')
    A(f's_lshl_b32 s{sT+1}, s{sR}, 2'); A(f's_add_u32 s{sT}, s{sT}, s{sT+1}')
    A(f's_add_u32 s{sT}, s{sT}, {WS_FLK}')
    add64(A, sFl, sWS, f's{sT}')
    accK, accV = 32, 48
    xf = [64, 68, 72, 76]
    ok = 16; ov = 24
    A('.p2align 6')
    A('L_p1_loop:')
    A('s_waitcnt vmcnt(4)')
    A('s_barrier')
    l = A.label('nofl')
    A(f's_cmp_lt_u32 s{sI}, 2'); A(f's_cbranch_scc1 {l}')
    A(f's_cmp_lg_u32 s{sW}, 0'); A(f's_cbranch_scc1 {l}')
    A(f's_sub_u32 s{sT}, s{sI}, 1')
    A(f'v_mov_b32 v{vT0}, s{sT}'); A(f'v_mov_b32 v{vT1}, 0')
    A('s_mov_b64 exec, 1')
    A(f'global_store_dword v{vT1}, v{vT0}, s[{sFl}:{sFl+1}] sc1')
    A('s_mov_b64 exec, -1')
    A(f'{l}:')
    l = A.label('nonext')
    A(f's_add_u32 s{sT+2}, s{sI}, 1')
    A(f's_cmp_ge_u32 s{sT+2}, s{sN}'); A(f's_cbranch_scc1 {l}')
    A(f's_add_u32 s{sT+2}, s{sSeg}, 3')
    A(f's_xor_b32 s{sT+3}, s{sXL}, {LW_X0 ^ LW_X1}')
    x_dma(A, sT + 2, f's{sT+3}')
    A(f'{l}:')
    A(f's_lshl_b32 s{sT}, s{sB}, 6'); A(f's_add_u32 s{sT}, s{sT}, s{sSeg}')
    A(f's_lshl_b32 s{sT}, s{sT}, 5'); A(f's_add_u32 s{sT}, s{sT}, s{sH}')
    A(f's_lshl_b32 s{sT}, s{sT}, 14')
    add64(A, sKVo, sWS, f's{sT}')
    rx = [12, 13, 14, 15]
    for k in range(4): A(f'v_add_u32 v{rx[k]}, s{sXL}, v{vXR[k]}')
    def xr(ks): return f'ds_read_b128 {v(xf[ks & 3], 4)}, v{rx[ks & 3]} offset:{(ks >> 2) * 1024}'
    for ks in range(3): A(xr(ks))
    for ks in range(32):
        A(f's_waitcnt lgkmcnt({min(2, 31 - ks)})')
        ck = '0' if ks == 0 else v(accK, 16); cv = '0' if ks == 0 else v(accV, 16)
        A(f'v_mfma_f32_32x32x16_bf16 {v(accK,16)}, {a_(4*ks,4)}, {v(xf[ks & 3],4)}, {ck}')
        A(f'v_mfma_f32_32x32x16_bf16 {v(accV,16)}, {v(xf[ks & 3],4)}, {a_(128 + 4*ks,4)}, {cv}')
        if ks + 3 < 32: A(xr(ks + 3))
    A('s_nop 15'); A('s_nop 3')
    for i in range(8): A(f'v_cvt_pk_bf16_f32 v{ok + i}, v{accK + 2*i}, v{accK + 2*i + 1}')
    A(f'global_store_dwordx4 v{vKs}, {v(ok,4)}, s[{sKVo}:{sKVo+1}] sc1')
    A(f'global_store_dwordx4 v{vKs}, {v(ok+4,4)}, s[{sKVo}:{sKVo+1}] offset:512 sc1')
    for gq, qs in enumerate([(0, 2), (1, 3)]):
        for z, q in enumerate(qs):
            A(f'v_cvt_pk_bf16_f32 v{ov + 4*gq + 2*z}, v{accV + 4*q}, v{accV + 4*q + 1}')
            A(f'v_cvt_pk_bf16_f32 v{ov + 4*gq + 2*z + 1}, v{accV + 4*q + 2}, v{accV + 4*q + 3}')
    A(f'global_store_dwordx4 v{vVs}, {v(ov,4)}, s[{sKVo}:{sKVo+1}] sc1')
    A(f'global_store_dwordx4 v{vVs}, {v(ov+4,4)}, s[{sKVo}:{sKVo+1}] offset:512 sc1')
    if opt.get('gate', 1): gate_part(A, opt)
    A(f's_add_u32 s{sSeg}, s{sSeg}, 3')
    A(f's_xor_b32 s{sXL}, s{sXL}, {LW_X0 ^ LW_X1}')
    A(f's_add_u32 s{sI}, s{sI}, 1')
    A(f's_cmp_lt_u32 s{sI}, s{sN}')
    A('s_cbranch_scc1 L_p1_loop')
    trace(A, to, 2)
    A('s_waitcnt vmcnt(0)')
    A('s_barrier')
    l = A.label('nofl2')
    A(f's_cmp_lg_u32 s{sW}, 0'); A(f's_cbranch_scc1 {l}')
    A(f'v_mov_b32 v{vT0}, s{sN}'); A(f'v_mov_b32 v{vT1}, 0')
    A('s_mov_b64 exec, 1')
    A(f'global_store_dword v{vT1}, v{vT0}, s[{sFl}:{sFl+1}] sc1')
    A('s_mov_b64 exec, -1')
    A(f'{l}:')

def worker_clear(A):
    A(f'v_mov_b32 v{vT1}, 0')
    A('s_mov_b64 exec, 1')
    A(f's_lshl_b32 s{sT}, s{sB}, 5'); A(f's_add_u32 s{sT}, s{sT}, s{sH}'); A(f's_lshl_b32 s{sT}, s{sT}, 4')
    A(f's_lshl_b32 s{sT+1}, s{sR}, 2'); A(f's_add_u32 s{sT}, s{sT}, s{sT+1}'); A(f's_add_u32 s{sT}, s{sT}, {WS_FLK}')
    A(f'v_mov_b32 v{vT0}, s{sT}'); A(f'global_store_dword v{vT0}, v{vT1}, s[{sWS}:{sWS+1}] sc1')
    A(f's_lshl_b32 s{sT}, s{sXCC}, 5'); A(f's_add_u32 s{sT}, s{sT}, s{sH}'); A(f's_lshl_b32 s{sT}, s{sT}, 2')
    A(f's_add_u32 s{sT}, s{sT}, {WS_FLR}')
    A(f'v_mov_b32 v{vT0}, s{sT}'); A(f'global_store_dword v{vT0}, v{vT1}, s[{sWS}:{sWS+1}]')
    l = A.label('nofla0')
    A(f's_cmp_lg_u32 s{sB}, 0'); A(f's_cbranch_scc1 {l}')
    A(f's_lshl_b32 s{sT}, s{sR}, 5'); A(f's_add_u32 s{sT}, s{sT}, s{sH}'); A(f's_lshl_b32 s{sT}, s{sT}, 6')
    A(f's_add_u32 s{sT}, s{sT}, {WS_FLA}')
    A(f'v_mov_b32 v{vT0}, s{sT}'); A(f'global_store_dword v{vT0}, v{vT1}, s[{sWS}:{sWS+1}] sc1')
    A(f'{l}:')
    A('s_waitcnt vmcnt(0)')
    l = A.label('noann')
    A(f's_cmp_lg_u32 s{sW}, 0'); A(f's_cbranch_scc1 {l}')
    A(f's_lshl_b32 s{sT}, s{sXCC}, 2'); A(f's_add_u32 s{sT}, s{sT}, 32')
    A(f'v_mov_b32 v{vT0}, s{sT}'); A(f'v_mov_b32 v{vT1}, 1')
    A(f'global_atomic_add v{vT0}, v{vT1}, s[{sDBG}:{sDBG+1}] sc1')
    A(f'{l}:')
    A('s_mov_b64 exec, -1')

def wait_cleared(A):
    lw = A.label('wclr')
    A(f'v_and_b32 v{vT0}, 7, v0'); A(f'v_lshlrev_b32 v{vT0}, 2, v{vT0}'); A(f'v_add_u32 v{vT0}, 32, v{vT0}')
    A(f'{lw}:')
    A(f'global_load_dword v{vT1}, v{vT0}, s[{sDBG}:{sDBG+1}] sc1')
    A('s_waitcnt vmcnt(0)')
    A(f'v_cmp_gt_u32 vcc, 32, v{vT1}')
    timeout_check(A, 'L_fail')
    A(f's_cbranch_vccnz {lw}')

def gate_part(A, opt):
    l = A.label('nogate')
    A(f's_cmp_lg_u32 s{sB}, 1'); A(f's_cbranch_scc1 {l}')
    A(f's_cmp_lg_u32 s{sH}, s{sI}'); A(f's_cbranch_scc1 {l}')
    A(f's_cmp_lg_u32 s{sW}, 0'); A(f's_cbranch_scc1 {l}')
    A(f's_load_dwordx2 s[{sA2}:{sA2+1}], s[0:1], 112')
    acc = 32; gw = 80; xf = 64
    A(f'v_lshrrev_b32 v{vT0}, 5, v0'); A(f'v_lshlrev_b32 v{vT0}, 4, v{vT0}')
    A('s_waitcnt lgkmcnt(0)')
    for half in range(2):
        for q in range(16):
            ks = 16 * half + q
            A(f'global_load_dwordx4 {v(gw + 4*q, 4)}, v{vT0}, s[{sA2}:{sA2+1}] offset:{ks * 32}')
        A('s_waitcnt vmcnt(0)')
        for q in range(16):
            ks = 16 * half + q
            A(f'ds_read_b128 {v(xf,4)}, v{12 + (ks & 3)} offset:{(ks >> 2) * 1024}')
            A('s_waitcnt lgkmcnt(0)')
            c = '0' if ks == 0 else v(acc, 16)
            A(f'v_mfma_f32_32x32x16_bf16 {v(acc,16)}, {v(gw + 4*q,4)}, {v(xf,4)}, {c}')
    A('s_nop 15'); A('s_nop 3')
    A(f'v_mul_f32 v{vT0}, 0xbfb8aa3b, v{acc}')
    A(f'v_exp_f32 v{vT0}, v{vT0}')
    A('s_nop 0')
    A(f'v_add_f32 v{vT0}, 1.0, v{vT0}')
    A(f'v_rcp_f32 v{vT0}, v{vT0}')
    A(f's_lshl_b32 s{sT}, s{sSeg}, 7'); A(f's_add_u32 s{sT}, s{sT}, {WS_G}')
    add64(A, sA2, sWS, f's{sT}')
    A(f'v_lshlrev_b32 v{vT1}, 2, v0')
    A('s_mov_b32 exec_hi, 0')
    A(f'global_store_dword v{vT1}, v{vT0}, s[{sA2}:{sA2+1}]')
    A('s_mov_b64 exec, -1')
    A('s_waitcnt vmcnt(0)')
    A(f'{l}:')


def load_f_weights(A, w, sWq, sWo, nt='nt'):
    vG = [12, 13, 14, 15]; vR = 16
    A(f'v_lshrrev_b32 v{vT0}, 4, v0')
    A(f'v_lshlrev_b32 v{vT1}, 2, v{vT0}')
    A(f'v_and_b32 v10, 15, v0')
    A(f'v_xor_b32 v10, v10, v{vT1}')
    A(f'v_lshlrev_b32 v10, 4, v10')
    A(f'v_add_u32 v{vT0}, {16 * w}, v{vT0}')
    A(f'v_lshl_add_u32 v{vG[0]}, v{vT0}, 13, v10')
    for ii in range(1, 4): A(f'v_add_u32 v{vG[ii]}, {ii * 32768}, v{vG[0]}')
    A(f'v_bfe_u32 v{vT0}, v0, 2, 2')
    A(f'v_xor_b32 v{vT1}, {w}, v{vT0}')
    A(f'v_lshlrev_b32 v{vT1}, 6, v{vT1}')
    A(f'v_lshrrev_b32 v10, 5, v0')
    A(f'v_lshl_add_u32 v17, v10, 3, v{vT0}')
    A(f'v_lshl_add_u32 v{vT1}, v17, 8, v{vT1}')
    A(f'v_bfe_u32 v17, v0, 4, 1')
    A(f'v_lshl_add_u32 v{vT1}, v17, 5, v{vT1}')
    A(f'v_and_b32 v18, 3, v0')
    A(f'v_lshl_add_u32 v11, v18, 3, v{vT1}')
    A(f'v_lshl_add_u32 v19, v10, 2, v{vT0}')
    A(f'v_lshlrev_b32 v19, 10, v19')
    A(f'v_lshl_add_u32 v19, v{vT0}, 6, v19')
    A(f'v_lshl_add_u32 v19, v17, 5, v19')
    A(f'v_lshl_add_u32 v19, v18, 3, v19')
    A(f'v_add_u32 v19, {LW_STG + 256 * w}, v19')
    def dma_q(c):
        add64(A, sA, sWq, c * 64 * 8192)
        for ii in range(4):
            A(f's_mov_b32 m0, {LW_STG + c * 16384 + w * 4096 + ii * 1024}')
            A('s_nop 0')
            A(f'global_load_lds_dwordx4 v{vG[ii]}, s[{sA}:{sA+1}] {nt}')
    def dma_o(c):
        for ii in range(4):
            e = 16 * c + 4 * w + ii
            add64(A, sA, sWo, e * 1024)
            A(f'v_xor_b32 v20, {64 * (e & 3)}, v{vL16}')
            A(f's_mov_b32 m0, {LW_STG + e * 1024}')
            A('s_nop 0')
            A(f'global_load_lds_dwordx4 v20, s[{sA}:{sA+1}] {nt}')
    for c in range(8): dma_q(c)
    for c in range(8):
        A('s_waitcnt vmcnt(28)')
        A('s_barrier')
        A(f'v_add_u32 v{vR}, {LW_STG + c * 16384}, v11')
        for ksl in range(4):
            for jj in range(2):
                A(f'ds_read_b64_tr_b16 {a_((4 * c + ksl) * 4 + 2 * jj, 2)}, v{vR} offset:{ksl * 4096 + jj * 1024}')
        A('s_waitcnt lgkmcnt(0)')
        A('s_barrier')
        dma_o(c)
    for tp in range(4):
        A(f's_waitcnt vmcnt({(3 - tp) * 8})')
        A('s_barrier')
        for ct in range(4):
            A(f'v_xor_b32 v{vR}, {64 * ct}, v19')
            A(f'v_add_u32 v{vR}, {tp * 32768}, v{vR}')
            for z in range(2):
                for jj in range(2):
                    kk = 2 * tp + z
                    A(f'ds_read_b64_tr_b16 {a_(128 + (ct * 8 + kk) * 4 + 2 * jj, 2)}, v{vR} offset:{z * 8192 + jj * 16384}')
        A('s_waitcnt lgkmcnt(0)')
    A('s_barrier')

def f_phase(A, opt):
    vQw, vKw, vOw, vFPs, vFPr, vOut, vKr, vQr, vAB = 10, 11, 16, 17, 18, 19, 20, 21, 22
    rx = [12, 13, 14, 15]
    MSK = 24
    ONE = 172; SEL = 176
    sWq, sWo = 60, 62
    sOut = 26; sFPb = 28; sFLR = 30; sFLM = 32; sFLA = 34; sKM = 36; sC = 48; sPrev = 38; sSlot = 39; sEX32 = 50
    A('L_f:')
    A(f's_mul_i32 s{sT}, s{sB}, 56')
    A(f's_add_u32 s{sA}, s0, s{sT}')
    A(f's_addc_u32 s{sA+1}, s1, 0')
    A(f's_load_dwordx2 s[{sWq}:{sWq+1}], s[{sA}:{sA+1}], 16')
    A(f's_load_dwordx2 s[{sWo}:{sWo+1}], s[{sA}:{sA+1}], 40')
    A(f's_load_dwordx2 s[{sOut}:{sOut+1}], s[0:1], 120')
    A(f's_load_dwordx2 s[{sX}:{sX+1}], s[0:1], 0')
    A('s_waitcnt lgkmcnt(0)')
    A(f's_lshl_b32 s{sT}, s{sH}, 8'); add64(A, sWq, sWq, f's{sT}')
    A(f's_lshl_b32 s{sT}, s{sH}, 17'); add64(A, sWo, sWo, f's{sT}')
    x_setup(A)
    A(f's_mov_b32 s{sSeg}, s{sR}')
    x_dma(A, sSeg, LW_X0)
    lend = A.label('fw'); labs = [A.label(f'fw{w}') for w in range(4)]
    for w in range(1, 4):
        A(f's_cmp_eq_u32 s{sW}, {w}'); A(f's_cbranch_scc1 {labs[w]}')
    for w in range(4):
        A(f'{labs[w]}:')
        load_f_weights(A, w, sWq, sWo, opt.get('wnt', 'nt'))
        if w < 3: A(f's_branch {lend}')
    A(f'{lend}:')
    to = dict(opt); to['tracev'] = ('v30', 'v31')
    trace(A, to, 3)
    n32, g2 = 32, 33
    A(f'v_and_b32 v{n32}, 31, v0'); A(f'v_lshrrev_b32 v{g2}, 5, v0')
    A(f'v_and_b32 v34, 15, v0'); A(f'v_lshrrev_b32 v35, 4, v0')
    A(f'v_lshl_add_u32 v{vT0}, v{g2}, 4, v34'); A(f'v_lshlrev_b32 v{vT0}, 4, v{vT0}')
    A(f'v_bfe_u32 v{vT1}, v0, 4, 1'); A(f'v_lshl_add_u32 v{vT0}, v{vT1}, 10, v{vT0}')
    A(f's_lshl_b32 s{sT}, s{sW}, 11'); A(f's_add_u32 s{sT}, s{sT}, {LW_Q}')
    A(f'v_add_u32 v{vQw}, s{sT}, v{vT0}')
    A(f's_and_b32 s{sT}, s{sW}, 1'); A(f's_lshl_b32 s{sT}, s{sT}, 10'); A(f's_add_u32 s{sT}, s{sT}, {LW_Q}')
    A(f'v_add_u32 v{vQr}, s{sT}, v{vL16}')
    A(f's_lshl_b32 s{sT}, s{sW}, 5'); A(f'v_add_u32 v{vT0}, s{sT}, v34')
    A(f'v_lshlrev_b32 v{vT0}, 5, v{vT0}'); A(f'v_lshl_add_u32 v{vT0}, v35, 3, v{vT0}')
    A(f'v_add_u32 v{vKw}, {LW_K}, v{vT0}')
    A(f'v_bfe_u32 v{vT0}, v0, 5, 1'); A(f'v_lshlrev_b32 v{vT0}, 4, v{vT0}')
    A(f'v_bfe_u32 v{vT1}, v0, 4, 1'); A(f'v_lshl_add_u32 v{vT0}, v{vT1}, 2, v{vT0}')
    A(f'v_bfe_u32 v{vT1}, v0, 2, 2'); A(f'v_add_u32 v{vT0}, v{vT0}, v{vT1}')
    A(f'v_and_b32 v{vT1}, 3, v0'); A(f'v_lshlrev_b32 v{vT1}, 3, v{vT1}')
    A(f'v_lshl_add_u32 v{vT0}, v{vT0}, 5, v{vT1}'); A(f'v_add_u32 v{vKr}, {LW_K}, v{vT0}')
    A(f'v_lshrrev_b32 v{vT0}, 1, v35'); A(f'v_lshlrev_b32 v{vT0}, 10, v{vT0}')
    A(f'v_and_b32 v{vT1}, 1, v35'); A(f'v_lshl_add_u32 v{vT1}, v{vT1}, 5, v34')
    A(f'v_lshl_add_u32 v{vT0}, v{vT1}, 4, v{vT0}')
    A(f's_lshr_b32 s{sT}, s{sW}, 1'); A(f's_lshl_b32 s{sT}, s{sT}, 12')
    A(f's_and_b32 s{sT+1}, s{sW}, 1'); A(f's_lshl_b32 s{sT+1}, s{sT+1}, 8')
    A(f's_add_u32 s{sT}, s{sT}, s{sT+1}'); A(f's_add_u32 s{sT}, s{sT}, {LW_O}')
    A(f'v_add_u32 v{vOw}, s{sT}, v{vT0}')
    A(f's_lshl_b32 s{sT}, s{sW}, 18'); A(f's_lshl_b32 s{sT+1}, s{sH}, 10'); A(f's_add_u32 s{sT}, s{sT}, s{sT+1}')
    A(f'v_add_u32 v{vFPs}, s{sT}, v{vL16}')
    A(f's_lshr_b32 s{sT}, s{sW}, 1'); A(f's_lshl_b32 s{sT}, s{sT}, 5')
    A(f's_and_b32 s{sT+1}, s{sW}, 1'); A(f's_lshl_b32 s{sT+1}, s{sT+1}, 4'); A(f's_add_u32 s{sT}, s{sT}, s{sT+1}')
    A(f'v_add_u32 v{vT0}, s{sT}, v34'); A(f'v_lshlrev_b32 v{vT0}, 4, v{vT0}')
    A(f'v_lshl_add_u32 v{vT0}, v35, 10, v{vT0}')
    A(f's_lshl_b32 s{sT}, s{sH}, 15'); A(f'v_add_u32 v{vFPr}, s{sT}, v{vT0}')
    A(f's_and_b32 s{sT}, s{sW}, 1'); A(f's_lshl_b32 s{sT}, s{sT}, 4'); A(f'v_add_u32 v{vT0}, s{sT}, v34')
    A(f'v_lshlrev_b32 v{vT0}, 10, v{vT0}'); A(f'v_lshl_add_u32 v{vT0}, v35, 4, v{vT0}')
    A(f's_lshl_b32 s{sT}, s{sH}, 5'); A(f's_lshr_b32 s{sT+1}, s{sW}, 1'); A(f's_lshl_b32 s{sT+1}, s{sT+1}, 3')
    A(f's_add_u32 s{sT}, s{sT}, s{sT+1}'); A(f'v_add_u32 v{vOut}, s{sT}, v{vT0}')
    A(f's_lshl_b32 s{sT}, s{sH}, 11'); A(f's_lshl_b32 s{sT+1}, s{sW}, 9'); A(f's_add_u32 s{sT}, s{sT}, s{sT+1}')
    A(f'v_add_u32 v{vAB}, s{sT}, v{vL16}')
    A(f'v_add_u32 v23, 65536, v{vL16}')
    A(f's_and_b32 s{sT}, s{sW}, 1'); A(f's_lshl_b32 s{sT}, s{sT}, 4'); A(f'v_add_u32 v{vT0}, s{sT}, v34')
    A(f'v_lshlrev_b32 v{vT1}, 2, v35')
    A(f'v_mov_b32 v36, 0xf149f2ca')
    for kt in range(2):
        for r in range(4):
            A(f'v_add_u32 v37, {16 * kt + r}, v{vT1}')
            A(f'v_cmp_gt_u32 vcc, v37, v{vT0}')
            A('s_nop 1')
            A(f'v_cndmask_b32 v{MSK + 4*kt + r}, 0, v36, vcc')
    for r in range(4): A(f'v_mov_b32 v{ONE + r}, 0x3f803f80')
    A(f'v_and_b32 v{vT0}, 7, v0'); A(f'v_lshrrev_b32 v{vT1}, 1, v{vT0}')
    A(f'v_and_b32 v{vT0}, 1, v{vT0}'); A(f'v_lshlrev_b32 v{vT0}, 4, v{vT0}')
    A(f'v_mov_b32 v36, 0x3f80'); A(f'v_lshlrev_b32 v{vT0}, v{vT0}, v36')
    for d in range(4):
        A(f'v_cmp_eq_u32 vcc, {d}, v{vT1}'); A('s_nop 1'); A(f'v_cndmask_b32 v{SEL + d}, 0, v{vT0}, vcc')
    A(f's_mov_b32 s{sC}, {hex(f32bits(SM_SCALE_LOG2E))}')
    A(f's_lshl_b32 s{sT}, s{sXCC}, 21'); A(f's_add_u32 s{sT}, s{sT}, {WS_FP}'); add64(A, sFPb, sWS, f's{sT}')
    A(f's_lshl_b32 s{sT}, s{sXCC}, 7'); A(f's_add_u32 s{sT}, s{sT}, {WS_FLR}'); add64(A, sFLR, sWS, f's{sT}')
    A(f's_lshl_b32 s{sT}, s{sB}, 5'); A(f's_add_u32 s{sT}, s{sT}, s{sH}'); A(f's_lshl_b32 s{sT}, s{sT}, 6')
    A(f's_add_u32 s{sT}, s{sT}, {WS_FLM}'); add64(A, sFLM, sWS, f's{sT}')
    A(f's_lshl_b32 s{sT}, s{sR}, 5'); A(f's_add_u32 s{sT}, s{sT}, s{sH}'); A(f's_lshl_b32 s{sT}, s{sT}, 6')
    A(f's_add_u32 s{sT}, s{sT}, {WS_FLA}'); add64(A, sFLA, sWS, f's{sT}')
    A(f's_cmp_eq_u32 s{sR}, 0'); A(f's_cselect_b32 s{sN}, 22, 21')
    A(f's_mov_b32 s{sI}, 0'); A(f's_mov_b32 s{sXL}, {LW_X0}')

    def poll_ge(base, voff_ins, lanes_hi0, need_sgpr, tag):
        lp = A.label(tag)
        for x in voff_ins: A(x)
        A(f'{lp}:')
        A(f'global_load_dword v{vT1}, v{vT0}, s[{base}:{base+1}] sc1')
        A('s_waitcnt vmcnt(0)')
        A(f'v_cmp_gt_u32 vcc, s{need_sgpr}, v{vT1}')
        timeout_check(A, 'L_fail')
        A(f's_cbranch_vccnz {lp}')

    def reduce_prev():
        A(f's_mov_b32 s{sT+4}, s{sI}')
        poll_ge(sFLR, [f'v_and_b32 v{vT0}, 31, v0', f'v_lshlrev_b32 v{vT0}, 2, v{vT0}'], False, sT + 4, 'flr')
        A(f's_sub_u32 s{sT}, s{sI}, 1'); A(f's_and_b32 s{sT}, s{sT}, 1'); A(f's_lshl_b32 s{sT}, s{sT}, 20')
        add64(A, sA, sFPb, f's{sT}')
        RL = 192; acc = 180
        for i8 in range(8):
            A(f'global_load_dwordx4 {v(RL + 4*i8, 4)}, v{vFPr}, s[{sA}:{sA+1}] sc1')
            if i8 < 7: add64(A, sA, sA, 4096)
        for i8 in range(8):
            A(f's_waitcnt vmcnt({7 - i8})')
            c = '0' if i8 == 0 else v(acc, 4)
            A(f'v_mfma_f32_16x16x32_bf16 {v(acc,4)}, {v(SEL,4)}, {v(RL + 4*i8,4)}, {c}')
        A(f's_lshl_b32 s{sT}, s{sPrev}, 16'); A(f's_add_u32 s{sT}, s{sT}, {WS_AB}'); add64(A, sA, sWS, f's{sT}')
        lB = A.label('bside'); lE = A.label('redend')
        A(f's_cmp_eq_u32 s{sB}, 1'); A(f's_cbranch_scc1 {lB}')
        A('s_nop 7')
        A('s_mov_b32 exec_hi, 0')
        A(f'global_store_dwordx4 v{vAB}, {v(acc,4)}, s[{sA}:{sA+1}] sc1')
        A('s_mov_b64 exec, -1')
        A('s_waitcnt vmcnt(0)')
        A('s_barrier')
        l = A.label('nofla')
        A(f's_cmp_lg_u32 s{sW}, 0'); A(f's_cbranch_scc1 {l}')
        A(f'v_mov_b32 v{vT0}, s{sI}'); A(f'v_mov_b32 v{vT1}, 0')
        A('s_mov_b64 exec, 1')
        A(f'global_store_dword v{vT1}, v{vT0}, s[{sFLA}:{sFLA+1}] sc1')
        A('s_mov_b64 exec, -1')
        A(f'{l}:')
        A(f's_branch {lE}')
        A(f'{lB}:')
        poll_ge(sFLA, [f'v_mov_b32 v{vT0}, 0'], False, sT + 4, 'fla')
        A('s_barrier')
        A('s_mov_b32 exec_hi, 0')
        A(f'global_load_dwordx4 v[184:187], v{vAB}, s[{sA}:{sA+1}] sc1')
        A(f's_lshl_b32 s{sT}, s{sPrev}, 7'); A(f's_and_b32 s{sT+1}, s{sW}, 1'); A(f's_lshl_b32 s{sT+1}, s{sT+1}, 6')
        A(f's_add_u32 s{sT}, s{sT}, s{sT+1}'); A(f's_add_u32 s{sT}, s{sT}, {WS_G}'); add64(A, sA2, sWS, f's{sT}')
        A(f'v_and_b32 v{vT0}, 15, v0'); A(f'v_lshlrev_b32 v{vT0}, 2, v{vT0}')
        A(f'global_load_dword v188, v{vT0}, s[{sA2}:{sA2+1}] sc1')
        A('s_waitcnt vmcnt(0)')
        for r in range(4):
            A(f'v_sub_f32 v{184 + r}, v{184 + r}, v{acc + r}')
            A(f'v_fma_f32 v{184 + r}, v188, v{184 + r}, v{acc + r}')
        A('v_cvt_pk_bf16_f32 v184, v184, v185'); A('v_cvt_pk_bf16_f32 v185, v186, v187')
        A(f's_lshl_b32 s{sT}, s{sPrev}, 15'); add64(A, sA2, sOut, f's{sT}')
        A(f'global_store_dwordx2 v{vOut}, v[184:185], s[{sA2}:{sA2+1}]')
        A('s_mov_b64 exec, -1')
        A(f'{lE}:')

    A('.p2align 6')
    A('L_f_loop:')
    A('s_waitcnt vmcnt(0)')
    A('s_barrier')
    l = A.label('nonext')
    A(f's_add_u32 s{sT+2}, s{sI}, 1')
    A(f's_cmp_ge_u32 s{sT+2}, s{sN}'); A(f's_cbranch_scc1 {l}')
    A(f's_add_u32 s{sT+2}, s{sSeg}, 3')
    A(f's_xor_b32 s{sT+3}, s{sXL}, {LW_X0 ^ LW_X1}')
    x_dma(A, sT + 2, f's{sT+3}')
    A(f'{l}:')
    A(f's_lshl_b32 s{sT}, s{sB}, 6'); A(f's_add_u32 s{sT}, s{sT}, s{sSeg}')
    A(f's_lshl_b32 s{sT}, s{sT}, 5'); A(f's_add_u32 s{sT}, s{sT}, s{sH}')
    A(f's_lshl_b32 s{sT+1}, s{sT}, 14'); add64(A, sKVo, sWS, f's{sT+1}')
    A(f's_lshl_b32 s{sT+1}, s{sT}, 13'); A(f's_add_u32 s{sT+1}, s{sT+1}, {WS_KM}'); add64(A, sKM, sWS, f's{sT+1}')
    KX = 80; VX = 112
    add64(A, sA, sKVo, 4096)
    for i in range(8):
        b = sKVo if i < 4 else sA
        A(f'global_load_dwordx4 {v(KX + 4*i, 4)}, v{vL16}, s[{b}:{b+1}] offset:{1024 * (i & 3)} sc1')
    A(f's_lshr_b32 s{sT}, s{sW}, 1'); A(f's_lshl_b32 s{sT}, s{sT}, 12'); A(f's_add_u32 s{sT}, s{sT}, 8192')
    add64(A, sA2, sKVo, f's{sT}')
    for f in range(4): A(f'global_load_dwordx4 {v(VX + 4*f, 4)}, v{vL16}, s[{sA2}:{sA2+1}] offset:{1024 * f} sc1')
    for k in range(4): A(f'v_add_u32 v{rx[k]}, s{sXL}, v{vXR[k]}')
    accQ = 32; xf = [64, 68, 72, 76]
    def xr(ks): return f'ds_read_b128 {v(xf[ks & 3], 4)}, v{rx[ks & 3]} offset:{(ks >> 2) * 1024}'
    for ks in range(3): A(xr(ks))
    for ks in range(32):
        A(f's_waitcnt lgkmcnt({min(2, 31 - ks)})')
        c = '0' if ks == 0 else v(accQ, 16)
        A(f'v_mfma_f32_32x32x16_bf16 {v(accQ,16)}, {a_(4*ks,4)}, {v(xf[ks & 3],4)}, {c}')
        if ks + 3 < 32: A(xr(ks + 3))
    A('s_nop 15'); A('s_nop 3')
    for i in range(8): A(f'v_cvt_pk_bf16_f32 v{48 + i}, v{accQ + 2*i}, v{accQ + 2*i + 1}')
    A(f'ds_write_b128 v{vQw}, v[48:51]')
    A(f'ds_write_b128 v{vQw}, v[52:55] offset:512')
    l = A.label('noprev')
    A(f's_cmp_eq_u32 s{sI}, 0'); A(f's_cbranch_scc1 {l}')
    reduce_prev()
    A(f'{l}:')
    A(f's_add_u32 s{sT+4}, s{sSeg}, 1')
    if not opt.get('nowaitm'):
        poll_ge(sFLM, [f'v_mov_b32 v{vT0}, 0'], False, sT + 4, 'flm')
    A(f's_lshl_b32 s{sT}, s{sW}, 10'); add64(A, sA, sKM, f's{sT}')
    A(f'global_load_dwordx2 v[128:129], v{vL16}, s[{sA}:{sA+1}] sc1')
    A(f's_lshr_b32 s{sT}, s{sW}, 1'); A(f's_lshl_b32 s{sT}, s{sT}, 11'); add64(A, sA, sKM, f's{sT}')
    A(f'global_load_dwordx2 v[130:131], v{vL16}, s[{sA}:{sA+1}] offset:8 sc1')
    A(f'global_load_dwordx2 v[132:133], v{vL16}, s[{sA}:{sA+1}] offset:1032 sc1')
    A('s_waitcnt vmcnt(2)')
    A(f'ds_write_b32 v{vKw}, v128')
    A(f'ds_write_b32 v{vKw}, v129 offset:512')
    A('s_waitcnt lgkmcnt(0)')
    A('s_barrier')
    qf = [64, 68, 72, 76]; kf = [136, 140, 144, 148]
    for ks in range(4): A(f'ds_read_b128 {v(qf[ks],4)}, v{vQr} offset:{ks * 2048}')
    for ks in range(4):
        for jj in range(2):
            A(f'ds_read_b64_tr_b16 {v(kf[ks] + 2*jj, 2)}, v{vKr} offset:{ks * 1024 + jj * 256}')
    A('s_waitcnt vmcnt(0) lgkmcnt(0)')
    S = [32, 36]; Sm = 40
    for ks in range(4):
        for kt in range(2):
            c = v(MSK + 4*kt, 4) if ks == 0 else v(S[kt], 4)
            A(f'v_mfma_f32_16x16x32_bf16 {v(S[kt],4)}, {v(KX + 4*(4*kt + ks),4)}, {v(qf[ks],4)}, {c}')
        c = '0' if ks == 0 else v(Sm, 4)
        A(f'v_mfma_f32_16x16x32_bf16 {v(Sm,4)}, {v(kf[ks],4)}, {v(qf[ks],4)}, {c}')
    A('s_nop 7'); A('s_nop 1')
    sx = [S[0] + r for r in range(4)] + [S[1] + r for r in range(4)]
    A(f'v_max3_f32 v{vT0}, v{sx[0]}, v{sx[1]}, v{sx[2]}')
    A(f'v_max3_f32 v{vT1}, v{sx[3]}, v{sx[4]}, v{sx[5]}')
    A(f'v_max3_f32 v{vT0}, v{vT0}, v{sx[6]}, v{sx[7]}')
    A(f'v_max3_f32 v{vT0}, v{vT0}, v{Sm}, v{Sm+1}')
    A(f'v_max_f32 v{vT0}, v{vT0}, v{vT1}')
    A(f'v_mov_b32 v{vT1}, v{vT0}'); A('s_nop 1')
    A(f'v_permlane16_swap_b32 v{vT0}, v{vT1}')
    A(f'v_max_f32 v{vT0}, v{vT0}, v{vT1}')
    A(f'v_mov_b32 v{vT1}, v{vT0}'); A('s_nop 1')
    A(f'v_permlane32_swap_b32 v{vT0}, v{vT1}')
    A(f'v_max_f32 v{vT0}, v{vT0}, v{vT1}')
    A(f'v_mul_f32 v{vT0}, s{sC}, v{vT0}')
    for r in sx + [Sm, Sm + 1]: A(f'v_fma_f32 v{r}, v{r}, s{sC}, -v{vT0}')
    for r in sx + [Sm, Sm + 1]: A(f'v_exp_f32 v{r}, v{r}')
    Px = 44; Pm = 48
    A('v_mov_b32 v49, 0'); A('v_mov_b32 v50, 0')
    for i in range(4): A(f'v_cvt_pk_bf16_f32 v{Px + i}, v{sx[2*i]}, v{sx[2*i+1]}')
    A(f'v_cvt_pk_bf16_f32 v48, v{Sm}, v{Sm+1}'); A(f'v_cvt_pk_bf16_f32 v51, v{Sm}, v{Sm+1}')
    O = [152 + 4*f for f in range(4)]; lacc = 168
    A('s_nop 1')
    A(f'v_mfma_f32_16x16x32_bf16 {v(lacc,4)}, {v(ONE,4)}, {v(Px,4)}, 0')
    for f in range(4): A(f'v_mfma_f32_16x16x32_bf16 {v(O[f],4)}, {v(VX + 4*f,4)}, {v(Px,4)}, 0')
    A(f'v_mfma_f32_16x16x16_bf16 {v(lacc,4)}, {v(ONE,2)}, v[48:49], {v(lacc,4)}')
    for f in range(4):
        bop = 'v[48:49]' if f % 2 == 0 else 'v[50:51]'
        A(f'v_mfma_f32_16x16x16_bf16 {v(O[f],4)}, {v(130 + 2*(f >> 1),2)}, {bop}, {v(O[f],4)}')
    A('s_nop 7'); A('s_nop 1')
    A(f'v_rcp_f32 v{vT0}, v{lacc}'); A('s_nop 0')
    for r in range(16): A(f'v_mul_f32 v{152 + r}, v{152 + r}, v{vT0}')
    for r in range(8): A(f'v_cvt_pk_bf16_f32 v{152 + r}, v{152 + 2*r}, v{153 + 2*r}')
    A(f'ds_write_b128 v{vOw}, v[152:155]')
    A(f'ds_write_b128 v{vOw}, v[156:159] offset:2048')
    A('s_waitcnt lgkmcnt(0)')
    A('s_barrier')
    of = [64 + 4*k for k in range(8)]
    for kk in range(8): A(f'ds_read_b128 {v(of[kk],4)}, v{vL16} offset:{LW_O - 65536 + kk * 1024}'.replace(f'v{vL16}', 'v23'))
    acc = [192 + 16*ct for ct in range(4)]
    for kk in range(8):
        A(f's_waitcnt lgkmcnt({7 - kk})')
        for ct in range(4):
            c = '0' if kk == 0 else v(acc[ct], 16)
            A(f'v_mfma_f32_32x32x16_bf16 {v(acc[ct],16)}, {a_(128 + (ct*8 + kk)*4,4)}, {v(of[kk],4)}, {c}')
    A('s_nop 15'); A('s_nop 3')
    A(f's_and_b32 s{sT}, s{sI}, 1'); A(f's_lshl_b32 s{sT}, s{sT}, 20'); add64(A, sA, sFPb, f's{sT}')
    for ct in range(4):
        o = 32 + 8 * (ct & 1)
        for i in range(8): A(f'v_cvt_pk_bf16_f32 v{o + i}, v{acc[ct] + 2*i}, v{acc[ct] + 2*i + 1}')
        for qq in range(2):
            A(f'global_store_dwordx4 v{vFPs}, {v(o + 4*qq, 4)}, s[{sA}:{sA+1}]')
            add64(A, sA, sA, 32768)
    A('s_waitcnt vmcnt(0)')
    A('s_barrier')
    l = A.label('noflr')
    A(f's_cmp_lg_u32 s{sW}, 0'); A(f's_cbranch_scc1 {l}')
    A(f's_add_u32 s{sT}, s{sI}, 1')
    A(f'v_mov_b32 v{vT0}, s{sT}'); A(f's_lshl_b32 s{sT}, s{sH}, 2'); A(f'v_mov_b32 v{vT1}, s{sT}')
    A('s_mov_b64 exec, 1')
    A(f'global_store_dword v{vT1}, v{vT0}, s[{sFLR}:{sFLR+1}]')
    A('s_mov_b64 exec, -1')
    A(f'{l}:')
    to2 = dict(opt); to2['tracev'] = ('v8', 'v9')
    trace(A, to2, 8, dyn=sI)
    A(f's_mov_b32 s{sPrev}, s{sSeg}')
    A(f's_add_u32 s{sSeg}, s{sSeg}, 3')
    A(f's_xor_b32 s{sXL}, s{sXL}, {LW_X0 ^ LW_X1}')
    A(f's_add_u32 s{sI}, s{sI}, 1')
    A(f's_cmp_lt_u32 s{sI}, s{sN}')
    A('s_cbranch_scc1 L_f_loop')
    reduce_prev()
    A('s_waitcnt vmcnt(0)')
    trace(A, to2, 4)
```

```python
import sys, json
from asmlib import *
import chain as CH
import worker as WK
from chain import sWS, sDBG, sW, sH, sB, sTO, sT

NAME = 'gated_mix__memory_aug_recurrent_mem_tr__memory_aug_recurrent_mem_tr__prompt'
HEADER = open('cdna_kernels/' + NAME + '.s.ref').read().split('; Override launch geometry')[0]

def prologue(A, opt):
    A('s_cmp_ge_u32 s2, 256')
    A('s_cbranch_scc1 L_exit')
    A(f's_load_dwordx2 s[{sWS}:{sWS+1}], s[0:1], 136')
    A(f's_load_dwordx2 s[{sDBG}:{sDBG+1}], s[0:1], 128')
    A('s_getreg_b32 s13, hwreg(HW_REG_XCC_ID, 0, 4)')
    A('v_lshrrev_b32 v1, 6, v0')
    A('v_and_b32 v0, 63, v0')
    A(f's_mov_b32 s{sTO}, 0x00200000')
    A(f'v_readfirstlane_b32 s{sW}, v1')
    A('s_and_b32 s13, s13, 7')
    A('s_waitcnt lgkmcnt(0)')
    l = A.label('notick')
    A(f's_cmp_lg_u32 s{sW}, 0'); A(f's_cbranch_scc1 {l}')
    A('s_lshl_b32 s14, s13, 2')
    A('v_mov_b32 v2, s14')
    A('v_mov_b32 v3, 1')
    A('s_mov_b64 exec, 1')
    A(f'global_atomic_add v4, v2, v3, s[{sDBG}:{sDBG+1}] sc0 sc1')
    A('s_waitcnt vmcnt(0)')
    A('v_mov_b32 v2, 0')
    A('ds_write_b32 v2, v4')
    A('s_waitcnt lgkmcnt(0)')
    A('s_mov_b64 exec, -1')
    A(f'{l}:')
    A('s_barrier')
    A('v_mov_b32 v2, 0')
    A('ds_read_b32 v4, v2')
    A('s_waitcnt lgkmcnt(0)')
    A(f'v_readfirstlane_b32 s{sH}, v4')
    A('s_barrier')
    A(f's_cmp_ge_u32 s{sH}, 32')
    A('s_cbranch_scc1 L_exit')
    A(f's_mov_b32 s{sB}, s13')
    if opt.get('trace'):
        A(f's_lshl_b32 s100, s13, 5'); A(f's_add_u32 s100, s100, s{sH}'); A('s_lshl_b32 s100, s100, 8')
        A(f's_add_u32 s100, s100, {TRACE_BASE}')
        o2 = dict(opt); o2['tracev'] = ('v30', 'v31')
        trace(A, o2, 0)

def worker_ids(A):
    A('s_mov_b32 s3, s13')
    A('s_sub_u32 s13, s13, 2')
    A(f's_and_b32 s{sB}, s13, 1')
    A('s_lshr_b32 s13, s13, 1')

def footer(A):
    A('L_fail:')
    A('v_mov_b32 v2, 252')
    A('v_mov_b32 v3, 0xdead')
    A('s_mov_b64 exec, 1')
    A(f'global_store_dword v2, v3, s[{sDBG}:{sDBG+1}] sc1')
    A('s_waitcnt vmcnt(0)')
    A('L_exit:')
    A('s_endpgm')

def build(opt):
    A = Asm()
    kname = NAME + '_kernel'
    A.lines.append(HEADER.rstrip('\n'))
    A.lines.append('; Override launch geometry by editing the next line (harness parses it).')
    A.lines.append('; @launch grid=(256,1,1) block=(256,1,1) lds=163840')
    A('.amdgcn_target "amdgcn-amd-amdhsa--gfx950"')
    A('.text')
    A(f'.globl {kname}')
    A('.p2align 8')
    A(f'.type {kname},@function')
    A(f'{kname}:')
    prologue(A, opt)
    if opt['mode'] == 'chain_test':
        A('s_cmp_lt_u32 s13, 2')
        A('s_cbranch_scc0 L_exit')
        CH.chain_role(A, opt)
    if opt['mode'] == 'p1_test':
        A('s_cmp_lt_u32 s13, 2')
        A('s_cbranch_scc1 L_exit')
        worker_ids(A)
        WK.p1_phase(A, opt)
        A('s_endpgm')
    if opt['mode'] == 'full':
        opt = dict(opt); opt['integ'] = 1
        A('s_cmp_lt_u32 s13, 2')
        A('s_cbranch_scc0 L_worker')
        CH.chain_role(A, opt)
        A('L_worker:')
        worker_ids(A)
        WK.worker_clear(A)
        WK.p1_phase(A, opt)
        WK.wait_cleared(A)
        WK.f_phase(A, opt)
    if opt['mode'] == 'f_test':
        A('s_cmp_lt_u32 s13, 2')
        A('s_cbranch_scc1 L_exit')
        worker_ids(A)
        WK.f_phase(A, opt)
    footer(A)
    A('.section .rodata,"a"')
    A('.p2align 6')
    A(f'.amdhsa_kernel {kname}')
    A('.amdhsa_next_free_vgpr 512')
    A('.amdhsa_next_free_sgpr 102')
    A('.amdhsa_accum_offset 256')
    A('.amdhsa_group_segment_fixed_size 0')
    A('.amdhsa_kernarg_size 144')
    A('.amdhsa_user_sgpr_count 2')
    A('.amdhsa_user_sgpr_kernarg_segment_ptr 1')
    A('.amdhsa_system_sgpr_workgroup_id_x 1')
    A('.amdhsa_float_denorm_mode_32 3')
    A('.end_amdhsa_kernel')
    return A.text()

if __name__ == '__main__':
    out = sys.argv[1]
    opt = json.loads(sys.argv[2])
    open(out, 'w').write(build(opt))
```

```python
from asmlib import *
from chain import (WS_KV, WS_KM, sWS, sDBG, sW, sH, sB, sTO, add64, timeout_check, f32bits, Lds, SM_SCALE_LOG2E)

WS_FLK = 0x07000000
WS_FLM = 0x07001000
WS_FLR = 0x07003000
WS_FLA = 0x07004000
WS_G   = 0x07010000
WS_FP  = 0x07100000
WS_AB  = 0x08200000
LW_X0  = 0
LW_X1  = 32768
LW_Q   = 65536
LW_O   = 73728
LW_K   = 81920
LW_KV0 = 86016
LW_KV1 = 102400
WS_FDUM = 0x08700000
LW_STG = 32768
sR = 13
sXCC = 3
sA = 14; sA2 = 16
sX = 18
sSeg = 20
sI = 21
sN = 22
sT = 54
sXL = 23
sKVo = 24
vL16 = 1
vXG = 2
vXR = [4, 5, 6, 7]
vT0, vT1 = 8, 9

def x_setup(A):
    A(f'v_lshlrev_b32 v{vL16}, 4, v0')
    A(f'v_lshrrev_b32 v{vT0}, 3, v0')
    A(f's_lshl_b32 s{sT}, s{sW}, 3')
    A(f'v_add_u32 v{vT0}, s{sT}, v{vT0}')
    A(f'v_bfe_u32 v{vT1}, v{vT0}, 1, 3')
    A(f'v_and_b32 v{vXG}, 7, v0')
    A(f'v_xor_b32 v{vXG}, v{vXG}, v{vT1}')
    A(f'v_lshlrev_b32 v{vXG}, 4, v{vXG}')
    A(f'v_lshl_add_u32 v{vXG}, v{vT0}, 10, v{vXG}')
    A(f'v_and_b32 v{vT0}, 31, v0')
    A(f'v_bfe_u32 v{vT1}, v{vT0}, 1, 3')
    A(f'v_lshrrev_b32 v10, 5, v0')
    A(f'v_xor_b32 v{vT1}, v{vT1}, v10')
    A(f'v_lshlrev_b32 v{vT1}, 4, v{vT1}')
    A(f'v_and_b32 v10, 7, v{vT0}')
    A(f'v_lshl_add_u32 v{vT1}, v10, 7, v{vT1}')
    A(f'v_lshrrev_b32 v10, 3, v{vT0}')
    A(f'v_lshl_add_u32 v{vXR[0]}, v10, 13, v{vT1}')
    for k in range(1, 4): A(f'v_xor_b32 v{vXR[k]}, {32 * k}, v{vXR[0]}')

def x_dma(A, seg_sgpr, lds_base):
    A(f's_lshl_b32 s{sT}, s{seg_sgpr}, 15')
    add64(A, sA, sX, f's{sT}')
    A(f's_lshl_b32 s{sT}, s{sW}, 13')
    A(f's_add_u32 s{sT}, s{sT}, {lds_base}')
    for kc in range(8):
        A(f's_add_u32 m0, s{sT}, {kc * 1024 - kc * 128}')
        A('s_nop 0')
        A(f'global_load_lds_dwordx4 v{vXG}, s[{sA}:{sA+1}] offset:{kc * 128}')

def load_qkv_weights(A, w, srcs, dsts, nt='nt'):
    vG = [12, 13, 14, 15]; vR = 16
    A(f'v_lshrrev_b32 v{vT0}, 4, v0')
    A(f'v_lshlrev_b32 v{vT1}, 2, v{vT0}')
    A(f'v_and_b32 v10, 15, v0')
    A(f'v_xor_b32 v10, v10, v{vT1}')
    A(f'v_lshlrev_b32 v10, 4, v10')
    A(f'v_add_u32 v{vT0}, {16 * w}, v{vT0}')
    A(f'v_lshl_add_u32 v{vG[0]}, v{vT0}, 13, v10')
    for ii in range(1, 4): A(f'v_add_u32 v{vG[ii]}, {ii * 32768}, v{vG[0]}')
    A(f'v_bfe_u32 v{vT0}, v0, 2, 2')
    A(f'v_xor_b32 v{vT1}, {w}, v{vT0}')
    A(f'v_lshlrev_b32 v{vT1}, 6, v{vT1}')
    A(f'v_lshrrev_b32 v10, 5, v0')
    A(f'v_lshl_add_u32 v{vT0}, v10, 3, v{vT0}')
    A(f'v_lshl_add_u32 v{vT1}, v{vT0}, 8, v{vT1}')
    A(f'v_bfe_u32 v10, v0, 4, 1')
    A(f'v_lshl_add_u32 v{vT1}, v10, 5, v{vT1}')
    A(f'v_and_b32 v10, 3, v0')
    A(f'v_lshl_add_u32 v11, v10, 3, v{vT1}')
    def dma(m, c):
        add64(A, sA, srcs[m], c * 64 * 8192)
        for ii in range(4):
            A(f's_mov_b32 m0, {LW_STG + c * 16384 + w * 4096 + ii * 1024}')
            A('s_nop 0')
            A(f'global_load_lds_dwordx4 v{vG[ii]}, s[{sA}:{sA+1}] {nt}')
    for c in range(8): dma(0, c)
    for m in range(len(srcs)):
        for c in range(8):
            left = (7 - c) * 4 if m == len(srcs) - 1 else 28
            A(f's_waitcnt vmcnt({left})')
            A('s_barrier')
            A(f'v_add_u32 v{vR}, {LW_STG + c * 16384}, v11')
            for ksl in range(4):
                for jj in range(2):
                    r = dsts[m] + (4 * c + ksl) * 4 + 2 * jj
                    A(f'ds_read_b64_tr_b16 {a_(r, 2)}, v{vR} offset:{ksl * 4096 + jj * 1024}')
            A('s_waitcnt lgkmcnt(0)')
            A('s_barrier')
            if m + 1 < len(srcs): dma(m + 1, c)

def p1_phase(A, opt):
    K = {'Wk': 60, 'Wv': 62}
    A('L_p1:')
    A(f's_mul_i32 s{sT}, s{sB}, 56')
    A(f's_add_u32 s{sA}, s0, s{sT}')
    A(f's_addc_u32 s{sA+1}, s1, 0')
    A(f's_load_dwordx4 s[60:63], s[{sA}:{sA+1}], 24')
    A(f's_load_dwordx2 s[{sX}:{sX+1}], s[0:1], 0')
    A('s_waitcnt lgkmcnt(0)')
    A(f's_lshl_b32 s{sT}, s{sH}, 8')
    for m in K: add64(A, K[m], K[m], f's{sT}')
    x_setup(A)
    A.c('first x tile into buffer 0 (outside the staging area)')
    A(f's_mov_b32 s{sSeg}, s{sR}')
    x_dma(A, sSeg, LW_X0)
    lend = A.label('p1w'); labs = [A.label(f'p1w{w}') for w in range(4)]
    for w in range(1, 4):
        A(f's_cmp_eq_u32 s{sW}, {w}'); A(f's_cbranch_scc1 {labs[w]}')
    for w in range(4):
        A(f'{labs[w]}:')
        load_qkv_weights(A, w, [K['Wk'], K['Wv']], [0, 128], opt.get('wnt', 'nt'))
        if w < 3: A(f's_branch {lend}')
    A(f'{lend}:')
    to = dict(opt); to['tracev'] = ('v30', 'v31')
    trace(A, to, 1)
    vKs, vVs = 10, 11
    A(f'v_and_b32 v{vT0}, 15, v0')
    A(f'v_lshrrev_b32 v{vT1}, 5, v0')
    A(f'v_lshl_add_u32 v{vT0}, v{vT1}, 4, v{vT0}')
    A(f'v_lshlrev_b32 v{vT0}, 4, v{vT0}')
    A(f'v_bfe_u32 v{vT1}, v0, 4, 1')
    A(f'v_lshl_add_u32 v{vKs}, v{vT1}, 12, v{vT0}')
    A(f's_lshl_b32 s{sT}, s{sW}, 10')
    A(f'v_add_u32 v{vKs}, s{sT}, v{vKs}')
    A(f'v_lshl_add_u32 v{vVs}, v{vT1}, 10, v{vT0}')
    A(f's_lshl_b32 s{sT}, s{sW}, 11')
    A(f's_add_u32 s{sT}, s{sT}, 8192')
    A(f'v_add_u32 v{vVs}, s{sT}, v{vVs}')
    A(f's_cmp_eq_u32 s{sR}, 0')
    A(f's_cselect_b32 s{sN}, 22, 21')
    A(f's_mov_b32 s{sI}, 0')
    A(f's_mov_b32 s{sXL}, {LW_X0}')
    sFl = 26
    A(f's_lshl_b32 s{sT}, s{sB}, 5'); A(f's_add_u32 s{sT}, s{sT}, s{sH}')
    A(f's_lshl_b32 s{sT}, s{sT}, 4')
    A(f's_lshl_b32 s{sT+1}, s{sR}, 2'); A(f's_add_u32 s{sT}, s{sT}, s{sT+1}')
    A(f's_add_u32 s{sT}, s{sT}, {WS_FLK}')
    add64(A, sFl, sWS, f's{sT}')
    accK, accV = 32, 48
    xf = [64, 68, 72, 76]
    ok = 16; ov = 24
    A('.p2align 6')
    A('L_p1_loop:')
    A('s_waitcnt vmcnt(4)')
    A('s_barrier')
    l = A.label('nofl')
    A(f's_cmp_lt_u32 s{sI}, 2'); A(f's_cbranch_scc1 {l}')
    A(f's_cmp_lg_u32 s{sW}, 0'); A(f's_cbranch_scc1 {l}')
    A(f's_sub_u32 s{sT}, s{sI}, 1')
    A(f'v_mov_b32 v{vT0}, s{sT}'); A(f'v_mov_b32 v{vT1}, 0')
    A('s_mov_b64 exec, 1')
    A(f'global_store_dword v{vT1}, v{vT0}, s[{sFl}:{sFl+1}] sc1')
    A('s_mov_b64 exec, -1')
    A(f'{l}:')
    l = A.label('nonext')
    A(f's_add_u32 s{sT+2}, s{sI}, 1')
    A(f's_cmp_ge_u32 s{sT+2}, s{sN}'); A(f's_cbranch_scc1 {l}')
    A(f's_add_u32 s{sT+2}, s{sSeg}, 3')
    A(f's_xor_b32 s{sT+3}, s{sXL}, {LW_X0 ^ LW_X1}')
    x_dma(A, sT + 2, f's{sT+3}')
    A(f'{l}:')
    A(f's_lshl_b32 s{sT}, s{sB}, 6'); A(f's_add_u32 s{sT}, s{sT}, s{sSeg}')
    A(f's_lshl_b32 s{sT}, s{sT}, 5'); A(f's_add_u32 s{sT}, s{sT}, s{sH}')
    A(f's_lshl_b32 s{sT}, s{sT}, 14')
    add64(A, sKVo, sWS, f's{sT}')
    rx = [12, 13, 14, 15]
    for k in range(4): A(f'v_add_u32 v{rx[k]}, s{sXL}, v{vXR[k]}')
    def xr(ks): return f'ds_read_b128 {v(xf[ks & 3], 4)}, v{rx[ks & 3]} offset:{(ks >> 2) * 1024}'
    for ks in range(3): A(xr(ks))
    for ks in range(32):
        A(f's_waitcnt lgkmcnt({min(2, 31 - ks)})')
        ck = '0' if ks == 0 else v(accK, 16); cv = '0' if ks == 0 else v(accV, 16)
        A(f'v_mfma_f32_32x32x16_bf16 {v(accK,16)}, {a_(4*ks,4)}, {v(xf[ks & 3],4)}, {ck}')
        A(f'v_mfma_f32_32x32x16_bf16 {v(accV,16)}, {v(xf[ks & 3],4)}, {a_(128 + 4*ks,4)}, {cv}')
        if ks + 3 < 32: A(xr(ks + 3))
    A('s_nop 15'); A('s_nop 3')
    for i in range(8): A(f'v_cvt_pk_bf16_f32 v{ok + i}, v{accK + 2*i}, v{accK + 2*i + 1}')
    A(f'global_store_dwordx4 v{vKs}, {v(ok,4)}, s[{sKVo}:{sKVo+1}] sc1')
    A(f'global_store_dwordx4 v{vKs}, {v(ok+4,4)}, s[{sKVo}:{sKVo+1}] offset:512 sc1')
    for gq, qs in enumerate([(0, 2), (1, 3)]):
        for z, q in enumerate(qs):
            A(f'v_cvt_pk_bf16_f32 v{ov + 4*gq + 2*z}, v{accV + 4*q}, v{accV + 4*q + 1}')
            A(f'v_cvt_pk_bf16_f32 v{ov + 4*gq + 2*z + 1}, v{accV + 4*q + 2}, v{accV + 4*q + 3}')
    A(f'global_store_dwordx4 v{vVs}, {v(ov,4)}, s[{sKVo}:{sKVo+1}] sc1')
    A(f'global_store_dwordx4 v{vVs}, {v(ov+4,4)}, s[{sKVo}:{sKVo+1}] offset:512 sc1')
    if opt.get('gate', 1): gate_part(A, opt)
    A(f's_add_u32 s{sSeg}, s{sSeg}, 3')
    A(f's_xor_b32 s{sXL}, s{sXL}, {LW_X0 ^ LW_X1}')
    A(f's_add_u32 s{sI}, s{sI}, 1')
    A(f's_cmp_lt_u32 s{sI}, s{sN}')
    A('s_cbranch_scc1 L_p1_loop')
    trace(A, to, 2)
    A('s_waitcnt vmcnt(0)')
    A('s_barrier')
    l = A.label('nofl2')
    A(f's_cmp_lg_u32 s{sW}, 0'); A(f's_cbranch_scc1 {l}')
    A(f'v_mov_b32 v{vT0}, s{sN}'); A(f'v_mov_b32 v{vT1}, 0')
    A('s_mov_b64 exec, 1')
    A(f'global_store_dword v{vT1}, v{vT0}, s[{sFl}:{sFl+1}] sc1')
    A('s_mov_b64 exec, -1')
    A(f'{l}:')

def worker_clear(A):
    A(f'v_mov_b32 v{vT1}, 0')
    A('s_mov_b64 exec, 1')
    A(f's_lshl_b32 s{sT}, s{sB}, 5'); A(f's_add_u32 s{sT}, s{sT}, s{sH}'); A(f's_lshl_b32 s{sT}, s{sT}, 4')
    A(f's_lshl_b32 s{sT+1}, s{sR}, 2'); A(f's_add_u32 s{sT}, s{sT}, s{sT+1}'); A(f's_add_u32 s{sT}, s{sT}, {WS_FLK}')
    A(f'v_mov_b32 v{vT0}, s{sT}'); A(f'global_store_dword v{vT0}, v{vT1}, s[{sWS}:{sWS+1}] sc1')
    A(f's_lshl_b32 s{sT}, s{sXCC}, 5'); A(f's_add_u32 s{sT}, s{sT}, s{sH}'); A(f's_lshl_b32 s{sT}, s{sT}, 2')
    A(f's_add_u32 s{sT}, s{sT}, {WS_FLR}')
    A(f'v_mov_b32 v{vT0}, s{sT}'); A(f'global_store_dword v{vT0}, v{vT1}, s[{sWS}:{sWS+1}]')
    A('s_mov_b64 exec, -1')
    l = A.label('nopoi')
    A(f's_cmp_lg_u32 s{sB}, 1'); A(f's_cbranch_scc1 {l}')
    A('v_mov_b64 v[12:13], -1'); A('v_mov_b64 v[14:15], -1')
    A(f's_lshl_b32 s{sT}, s{sH}, 11'); A(f's_lshl_b32 s{sT+1}, s{sW}, 9'); A(f's_add_u32 s{sT}, s{sT}, s{sT+1}')
    A(f's_lshl_b32 s{sT+1}, s{sR}, 16'); A(f's_add_u32 s{sT}, s{sT}, s{sT+1}'); A(f's_add_u32 s{sT}, s{sT}, {WS_AB}')
    A(f'v_lshlrev_b32 v{vT0}, 4, v0'); A(f'v_add_u32 v{vT0}, s{sT}, v{vT0}')
    A('s_mov_b32 exec_hi, 0')
    for i in range(22):
        if i == 21:
            l2 = A.label('nolast'); A(f's_cmp_lg_u32 s{sR}, 0'); A(f's_cbranch_scc1 {l2}')
        A(f'global_store_dwordx4 v{vT0}, v[12:15], s[{sWS}:{sWS+1}] sc1')
        A(f'v_add_u32 v{vT0}, {3 * 65536}, v{vT0}')
        if i == 21: A(f'{l2}:')
    A('s_mov_b64 exec, -1')
    A(f'{l}:')
    A('s_waitcnt vmcnt(0)')
    A('s_barrier')
    A('s_mov_b64 exec, 1')
    l = A.label('noann')
    A(f's_cmp_lg_u32 s{sW}, 0'); A(f's_cbranch_scc1 {l}')
    A(f's_lshl_b32 s{sT}, s{sXCC}, 2'); A(f's_add_u32 s{sT}, s{sT}, 32')
    A(f'v_mov_b32 v{vT0}, s{sT}'); A(f'v_mov_b32 v{vT1}, 1')
    A(f'global_atomic_add v{vT0}, v{vT1}, s[{sDBG}:{sDBG+1}] sc1')
    A(f'{l}:')
    A('s_mov_b64 exec, -1')

def wait_cleared(A):
    lw = A.label('wclr')
    A(f'v_and_b32 v{vT0}, 7, v0'); A(f'v_lshlrev_b32 v{vT0}, 2, v{vT0}'); A(f'v_add_u32 v{vT0}, 32, v{vT0}')
    A(f'{lw}:')
    A(f'global_load_dword v{vT1}, v{vT0}, s[{sDBG}:{sDBG+1}] sc1')
    A('s_waitcnt vmcnt(0)')
    A(f'v_cmp_gt_u32 vcc, 32, v{vT1}')
    timeout_check(A, 'L_fail')
    A(f's_cbranch_vccnz {lw}')

def gate_part(A, opt):
    l = A.label('nogate')
    A(f's_cmp_lg_u32 s{sB}, 1'); A(f's_cbranch_scc1 {l}')
    A(f's_cmp_lg_u32 s{sH}, s{sI}'); A(f's_cbranch_scc1 {l}')
    A(f's_cmp_lg_u32 s{sW}, 0'); A(f's_cbranch_scc1 {l}')
    A(f's_load_dwordx2 s[{sA2}:{sA2+1}], s[0:1], 112')
    acc = 32; gw = 80; xf = 64
    A(f'v_lshrrev_b32 v{vT0}, 5, v0'); A(f'v_lshlrev_b32 v{vT0}, 4, v{vT0}')
    A('s_waitcnt lgkmcnt(0)')
    for half in range(2):
        for q in range(16):
            ks = 16 * half + q
            A(f'global_load_dwordx4 {v(gw + 4*q, 4)}, v{vT0}, s[{sA2}:{sA2+1}] offset:{ks * 32}')
        A('s_waitcnt vmcnt(0)')
        for q in range(16):
            ks = 16 * half + q
            A(f'ds_read_b128 {v(xf,4)}, v{12 + (ks & 3)} offset:{(ks >> 2) * 1024}')
            A('s_waitcnt lgkmcnt(0)')
            c = '0' if ks == 0 else v(acc, 16)
            A(f'v_mfma_f32_32x32x16_bf16 {v(acc,16)}, {v(gw + 4*q,4)}, {v(xf,4)}, {c}')
    A('s_nop 15'); A('s_nop 3')
    A(f'v_mul_f32 v{vT0}, 0xbfb8aa3b, v{acc}')
    A(f'v_exp_f32 v{vT0}, v{vT0}')
    A('s_nop 0')
    A(f'v_add_f32 v{vT0}, 1.0, v{vT0}')
    A(f'v_rcp_f32 v{vT0}, v{vT0}')
    A(f's_lshl_b32 s{sT}, s{sSeg}, 7'); A(f's_add_u32 s{sT}, s{sT}, {WS_G}')
    add64(A, sA2, sWS, f's{sT}')
    A(f'v_lshlrev_b32 v{vT1}, 2, v0')
    A('s_mov_b32 exec_hi, 0')
    A(f'global_store_dword v{vT1}, v{vT0}, s[{sA2}:{sA2+1}]')
    A('s_mov_b64 exec, -1')
    A('s_waitcnt vmcnt(0)')
    A(f'{l}:')


def load_f_weights(A, w, sWq, sWo, nt='nt'):
    vG = [12, 13, 14, 15]; vR = 16
    A(f'v_lshrrev_b32 v{vT0}, 4, v0')
    A(f'v_lshlrev_b32 v{vT1}, 2, v{vT0}')
    A(f'v_and_b32 v10, 15, v0')
    A(f'v_xor_b32 v10, v10, v{vT1}')
    A(f'v_lshlrev_b32 v10, 4, v10')
    A(f'v_add_u32 v{vT0}, {16 * w}, v{vT0}')
    A(f'v_lshl_add_u32 v{vG[0]}, v{vT0}, 13, v10')
    for ii in range(1, 4): A(f'v_add_u32 v{vG[ii]}, {ii * 32768}, v{vG[0]}')
    A(f'v_bfe_u32 v{vT0}, v0, 2, 2')
    A(f'v_xor_b32 v{vT1}, {w}, v{vT0}')
    A(f'v_lshlrev_b32 v{vT1}, 6, v{vT1}')
    A(f'v_lshrrev_b32 v10, 5, v0')
    A(f'v_lshl_add_u32 v17, v10, 3, v{vT0}')
    A(f'v_lshl_add_u32 v{vT1}, v17, 8, v{vT1}')
    A(f'v_bfe_u32 v17, v0, 4, 1')
    A(f'v_lshl_add_u32 v{vT1}, v17, 5, v{vT1}')
    A(f'v_and_b32 v18, 3, v0')
    A(f'v_lshl_add_u32 v11, v18, 3, v{vT1}')
    A(f'v_lshl_add_u32 v19, v10, 2, v{vT0}')
    A(f'v_lshlrev_b32 v19, 10, v19')
    A(f'v_lshl_add_u32 v19, v{vT0}, 6, v19')
    A(f'v_lshl_add_u32 v19, v17, 5, v19')
    A(f'v_lshl_add_u32 v19, v18, 3, v19')
    A(f'v_add_u32 v19, {LW_STG + 256 * w}, v19')
    def dma_q(c):
        add64(A, sA, sWq, c * 64 * 8192)
        for ii in range(4):
            A(f's_mov_b32 m0, {LW_STG + c * 16384 + w * 4096 + ii * 1024}')
            A('s_nop 0')
            A(f'global_load_lds_dwordx4 v{vG[ii]}, s[{sA}:{sA+1}] {nt}')
    def dma_o(c):
        for ii in range(4):
            e = 16 * c + 4 * w + ii
            add64(A, sA, sWo, e * 1024)
            A(f'v_xor_b32 v20, {64 * (e & 3)}, v{vL16}')
            A(f's_mov_b32 m0, {LW_STG + e * 1024}')
            A('s_nop 0')
            A(f'global_load_lds_dwordx4 v20, s[{sA}:{sA+1}] {nt}')
    for c in range(8): dma_q(c)
    for c in range(8):
        A('s_waitcnt vmcnt(28)')
        A('s_barrier')
        A(f'v_add_u32 v{vR}, {LW_STG + c * 16384}, v11')
        for ksl in range(4):
            for jj in range(2):
                A(f'ds_read_b64_tr_b16 {a_((4 * c + ksl) * 4 + 2 * jj, 2)}, v{vR} offset:{ksl * 4096 + jj * 1024}')
        A('s_waitcnt lgkmcnt(0)')
        A('s_barrier')
        dma_o(c)
    for tp in range(4):
        A(f's_waitcnt vmcnt({(3 - tp) * 8})')
        A('s_barrier')
        for ct in range(4):
            A(f'v_xor_b32 v{vR}, {64 * ct}, v19')
            A(f'v_add_u32 v{vR}, {tp * 32768}, v{vR}')
            for z in range(2):
                for jj in range(2):
                    kk = 2 * tp + z
                    A(f'ds_read_b64_tr_b16 {a_(128 + (ct * 8 + kk) * 4 + 2 * jj, 2)}, v{vR} offset:{z * 8192 + jj * 16384}')
        A('s_waitcnt lgkmcnt(0)')
    A('s_barrier')

def f_phase(A, opt):
    vQw, vKw, vOw, vFPs, vFPr, vOut, vKr, vQr, vAB = 10, 11, 16, 17, 18, 19, 20, 21, 22
    rx = [12, 13, 14, 15]
    MSK = 24
    ONE = 172; SEL = 176
    sWq, sWo = 60, 62
    sOut = 26; sFPb = 28; sFLR = 30; sFLM = 32; sFLA = 34; sKM = 36; sC = 48; sPrev = 38; sSlot = 39; sEX32 = 50
    A('L_f:')
    A(f's_mul_i32 s{sT}, s{sB}, 56')
    A(f's_add_u32 s{sA}, s0, s{sT}')
    A(f's_addc_u32 s{sA+1}, s1, 0')
    A(f's_load_dwordx2 s[{sWq}:{sWq+1}], s[{sA}:{sA+1}], 16')
    A(f's_load_dwordx2 s[{sWo}:{sWo+1}], s[{sA}:{sA+1}], 40')
    A(f's_load_dwordx2 s[{sOut}:{sOut+1}], s[0:1], 120')
    A(f's_load_dwordx2 s[{sX}:{sX+1}], s[0:1], 0')
    A('s_waitcnt lgkmcnt(0)')
    A(f's_lshl_b32 s{sT}, s{sH}, 8'); add64(A, sWq, sWq, f's{sT}')
    A(f's_lshl_b32 s{sT}, s{sH}, 17'); add64(A, sWo, sWo, f's{sT}')
    x_setup(A)
    A(f's_mov_b32 s{sSeg}, s{sR}')
    x_dma(A, sSeg, LW_X0)
    lend = A.label('fw'); labs = [A.label(f'fw{w}') for w in range(4)]
    for w in range(1, 4):
        A(f's_cmp_eq_u32 s{sW}, {w}'); A(f's_cbranch_scc1 {labs[w]}')
    for w in range(4):
        A(f'{labs[w]}:')
        load_f_weights(A, w, sWq, sWo, opt.get('wnt', 'nt'))
        if w < 3: A(f's_branch {lend}')
    A(f'{lend}:')
    to = dict(opt); to['tracev'] = ('v30', 'v31')
    trace(A, to, 3)
    n32, g2 = 32, 33
    A(f'v_and_b32 v{n32}, 31, v0'); A(f'v_lshrrev_b32 v{g2}, 5, v0')
    A(f'v_and_b32 v34, 15, v0'); A(f'v_lshrrev_b32 v35, 4, v0')
    A(f'v_lshl_add_u32 v{vT0}, v{g2}, 4, v34'); A(f'v_lshlrev_b32 v{vT0}, 4, v{vT0}')
    A(f'v_bfe_u32 v{vT1}, v0, 4, 1'); A(f'v_lshl_add_u32 v{vT0}, v{vT1}, 10, v{vT0}')
    A(f's_lshl_b32 s{sT}, s{sW}, 11'); A(f's_add_u32 s{sT}, s{sT}, {LW_Q}')
    A(f'v_add_u32 v{vQw}, s{sT}, v{vT0}')
    A(f's_and_b32 s{sT}, s{sW}, 1'); A(f's_lshl_b32 s{sT}, s{sT}, 10'); A(f's_add_u32 s{sT}, s{sT}, {LW_Q}')
    A(f'v_add_u32 v{vQr}, s{sT}, v{vL16}')
    A(f's_lshl_b32 s{sT}, s{sW}, 5'); A(f'v_add_u32 v{vT0}, s{sT}, v34')
    A(f'v_lshlrev_b32 v{vT0}, 5, v{vT0}'); A(f'v_lshl_add_u32 v{vT0}, v35, 3, v{vT0}')
    A(f'v_add_u32 v{vKw}, {LW_K}, v{vT0}')
    A(f'v_bfe_u32 v{vT0}, v0, 5, 1'); A(f'v_lshlrev_b32 v{vT0}, 4, v{vT0}')
    A(f'v_bfe_u32 v{vT1}, v0, 4, 1'); A(f'v_lshl_add_u32 v{vT0}, v{vT1}, 2, v{vT0}')
    A(f'v_bfe_u32 v{vT1}, v0, 2, 2'); A(f'v_add_u32 v{vT0}, v{vT0}, v{vT1}')
    A(f'v_and_b32 v{vT1}, 3, v0'); A(f'v_lshlrev_b32 v{vT1}, 3, v{vT1}')
    A(f'v_lshl_add_u32 v{vT0}, v{vT0}, 5, v{vT1}'); A(f'v_add_u32 v{vKr}, {LW_K}, v{vT0}')
    A(f'v_lshrrev_b32 v{vT0}, 1, v35'); A(f'v_lshlrev_b32 v{vT0}, 10, v{vT0}')
    A(f'v_and_b32 v{vT1}, 1, v35'); A(f'v_lshl_add_u32 v{vT1}, v{vT1}, 5, v34')
    A(f'v_lshl_add_u32 v{vT0}, v{vT1}, 4, v{vT0}')
    A(f's_lshr_b32 s{sT}, s{sW}, 1'); A(f's_lshl_b32 s{sT}, s{sT}, 12')
    A(f's_and_b32 s{sT+1}, s{sW}, 1'); A(f's_lshl_b32 s{sT+1}, s{sT+1}, 8')
    A(f's_add_u32 s{sT}, s{sT}, s{sT+1}'); A(f's_add_u32 s{sT}, s{sT}, {LW_O}')
    A(f'v_add_u32 v{vOw}, s{sT}, v{vT0}')
    A(f's_lshl_b32 s{sT}, s{sW}, 18'); A(f's_lshl_b32 s{sT+1}, s{sH}, 10'); A(f's_add_u32 s{sT}, s{sT}, s{sT+1}')
    A(f'v_add_u32 v{vFPs}, s{sT}, v{vL16}')
    A(f's_lshr_b32 s{sT}, s{sW}, 1'); A(f's_lshl_b32 s{sT}, s{sT}, 5')
    A(f's_and_b32 s{sT+1}, s{sW}, 1'); A(f's_lshl_b32 s{sT+1}, s{sT+1}, 4'); A(f's_add_u32 s{sT}, s{sT}, s{sT+1}')
    A(f'v_add_u32 v{vT0}, s{sT}, v34'); A(f'v_lshlrev_b32 v{vT0}, 4, v{vT0}')
    A(f'v_lshl_add_u32 v{vT0}, v35, 10, v{vT0}')
    A(f's_lshl_b32 s{sT}, s{sH}, 15'); A(f'v_add_u32 v{vFPr}, s{sT}, v{vT0}')
    A(f's_and_b32 s{sT}, s{sW}, 1'); A(f's_lshl_b32 s{sT}, s{sT}, 4'); A(f'v_add_u32 v{vT0}, s{sT}, v34')
    A(f'v_lshlrev_b32 v{vT0}, 10, v{vT0}'); A(f'v_lshl_add_u32 v{vT0}, v35, 4, v{vT0}')
    A(f's_lshl_b32 s{sT}, s{sH}, 5'); A(f's_lshr_b32 s{sT+1}, s{sW}, 1'); A(f's_lshl_b32 s{sT+1}, s{sT+1}, 3')
    A(f's_add_u32 s{sT}, s{sT}, s{sT+1}'); A(f'v_add_u32 v{vOut}, s{sT}, v{vT0}')
    A(f's_lshl_b32 s{sT}, s{sH}, 11'); A(f's_lshl_b32 s{sT+1}, s{sW}, 9'); A(f's_add_u32 s{sT}, s{sT}, s{sT+1}')
    A(f'v_add_u32 v{vAB}, s{sT}, v{vL16}')
    A(f'v_add_u32 v23, 65536, v{vL16}')
    A(f's_and_b32 s{sT}, s{sW}, 1'); A(f's_lshl_b32 s{sT}, s{sT}, 4'); A(f'v_add_u32 v{vT0}, s{sT}, v34')
    A(f'v_lshlrev_b32 v{vT1}, 2, v35')
    A(f'v_mov_b32 v36, 0xf149f2ca')
    for kt in range(2):
        for r in range(4):
            A(f'v_add_u32 v37, {16 * kt + r}, v{vT1}')
            A(f'v_cmp_gt_u32 vcc, v37, v{vT0}')
            A('s_nop 1')
            A(f'v_cndmask_b32 v{MSK + 4*kt + r}, 0, v36, vcc')
    for r in range(4): A(f'v_mov_b32 v{ONE + r}, 0x3f803f80')
    A(f'v_and_b32 v{vT0}, 7, v0'); A(f'v_lshrrev_b32 v{vT1}, 1, v{vT0}')
    A(f'v_and_b32 v{vT0}, 1, v{vT0}'); A(f'v_lshlrev_b32 v{vT0}, 4, v{vT0}')
    A(f'v_mov_b32 v36, 0x3f80'); A(f'v_lshlrev_b32 v{vT0}, v{vT0}, v36')
    for d in range(4):
        A(f'v_cmp_eq_u32 vcc, {d}, v{vT1}'); A('s_nop 1'); A(f'v_cndmask_b32 v{SEL + d}, 0, v{vT0}, vcc')
    A(f's_mov_b32 s{sC}, {hex(f32bits(SM_SCALE_LOG2E))}')
    A(f's_lshl_b32 s{sT}, s{sXCC}, 21'); A(f's_add_u32 s{sT}, s{sT}, {WS_FP}'); add64(A, sFPb, sWS, f's{sT}')
    A(f's_lshl_b32 s{sT}, s{sXCC}, 7'); A(f's_add_u32 s{sT}, s{sT}, {WS_FLR}'); add64(A, sFLR, sWS, f's{sT}')
    A(f's_lshl_b32 s{sT}, s{sB}, 5'); A(f's_add_u32 s{sT}, s{sT}, s{sH}'); A(f's_lshl_b32 s{sT}, s{sT}, 6')
    A(f's_add_u32 s{sT}, s{sT}, {WS_FLM}'); add64(A, sFLM, sWS, f's{sT}')
    A(f's_lshl_b32 s{sT}, s{sR}, 5'); A(f's_add_u32 s{sT}, s{sT}, s{sH}'); A(f's_lshl_b32 s{sT}, s{sT}, 6')
    A(f's_add_u32 s{sT}, s{sT}, {WS_FLA}'); add64(A, sFLA, sWS, f's{sT}')
    A(f's_cmp_eq_u32 s{sR}, 0'); A(f's_cselect_b32 s{sN}, 22, 21')
    A(f's_mov_b32 s{sI}, 0'); A(f's_mov_b32 s{sXL}, {LW_X0}')

    NF = 10
    def fst(i):
        if opt.get('fstamps'): A(f's_memtime s[{64 + 2*i}:{65 + 2*i}]')
    def fst_acc():
        if opt.get('fstamps'):
            A('s_waitcnt lgkmcnt(0)')
            for i in range(NF - 1):
                A(f's_sub_u32 s{sT}, s{64 + 2*(i+1)}, s{64 + 2*i}'); A(f's_add_u32 s{84 + i}, s{84 + i}, s{sT}')
    if opt.get('fstamps'):
        for i in range(NF): A(f's_mov_b32 s{84 + i}, 0')
    slow = []
    vF0, vF1 = 189, 190
    vFA = 191
    vKVr = 3
    A(f'v_and_b32 v{vFA}, 31, v0'); A(f'v_lshlrev_b32 v{vFA}, 2, v{vFA}')
    RL = 192; RES = 180; AV = 184; GV = 188
    sAB = 40; sOutP = 42; sKVn = 44; sKVL = 46; sRed = 64 if not opt.get('fstamps') else 94
    class Vm:
        def __init__(self): self.q = []; self.done = -1
        def op(self, tag, ins): A(ins); self.q.append(tag)
        def mk(self, tag, ins): return lambda: self.op(tag, ins)
        def need(self, *tags):
            last = max(len(self.q) - 1 - self.q[::-1].index(t) for t in tags)
            if last > self.done:
                n = len(self.q) - 1 - last; assert n <= 63
                A(f's_waitcnt vmcnt({n})'); self.done = last
        def drain(self): A('s_waitcnt vmcnt(0)'); self.done = len(self.q) - 1
    def kv_setup(seg_sgpr, ldsbase_sgpr):
        A(f's_lshl_b32 s{sT}, s{sB}, 6'); A(f's_add_u32 s{sT}, s{sT}, s{seg_sgpr}')
        A(f's_lshl_b32 s{sT}, s{sT}, 5'); A(f's_add_u32 s{sT}, s{sT}, s{sH}')
        A(f's_lshl_b32 s{sT}, s{sT}, 14'); A(f's_lshl_b32 s{sT+1}, s{sW}, 12'); A(f's_add_u32 s{sT}, s{sT}, s{sT+1}')
        add64(A, sKVn, sWS, f's{sT}')
        A(f's_add_u32 s{sKVL+1}, s{sT+1}, s{ldsbase_sgpr}')
    def check_flr(need_sgpr):
        ls = A.label('flrslow'); lb = A.label('flrok')
        A(f'v_cmp_gt_u32 vcc, s{need_sgpr}, v{vF1}')
        A(f's_cbranch_vccnz {ls}')
        A(f'{lb}:')
        slow.append(('flr', ls, lb, need_sgpr))
    def check_flm(need_sgpr):
        ls = A.label('flmslow'); lb = A.label('flmok')
        A(f'v_readfirstlane_b32 s{sT+5}, v{vF0}')
        A('s_nop 0')
        A(f's_cmp_lt_u32 s{sT+5}, s{need_sgpr}')
        A(f's_cbranch_scc1 {ls}')
        A(f'{lb}:')
        slow.append(('flm', ls, lb, need_sgpr))
    def a_store_ins(): return f'global_store_dwordx4 v{vAB}, {v(RES,4)}, s[{sAB}:{sAB+1}] sc1'
    def b_finish(skip0):
        lp = A.label('await'); lok = A.label('aok')
        A('s_mov_b32 exec_hi, 0')
        if skip0:
            A(f's_cmp_eq_u32 s{sI}, 0'); A(f's_cbranch_scc1 {lok}')
        A(f'{lp}:')
        A(f'v_cmp_eq_u32 vcc, -1, v{AV}')
        A(f's_cbranch_vccz {lok}')
        A(f'global_load_dwordx4 {v(AV,4)}, v{vAB}, s[{sAB}:{sAB+1}] sc1')
        A('s_waitcnt vmcnt(0)')
        timeout_check(A, 'L_fail')
        A(f's_branch {lp}')
        A(f'{lok}:')
        for r in range(4):
            A(f'v_sub_f32 v{AV + r}, v{AV + r}, v{RES + r}')
            A(f'v_fma_f32 v{AV + r}, v{GV}, v{AV + r}, v{RES + r}')
        A(f'v_cvt_pk_bf16_f32 v{AV}, v{AV}, v{AV+1}'); A(f'v_cvt_pk_bf16_f32 v{AV+1}, v{AV+2}, v{AV+3}')
        A(f'global_store_dwordx2 v{vOut}, {v(AV,2)}, s[{sOutP}:{sOutP+1}]')
        A('s_mov_b64 exec, -1')
    def prev_bases():
        A(f's_lshl_b32 s{sT}, s{sPrev}, 16'); A(f's_add_u32 s{sT}, s{sT}, {WS_AB}')
        A(f's_cmp_eq_u32 s{sI}, 0'); A(f's_cselect_b32 s{sT}, {WS_FDUM}, s{sT}')
        add64(A, sAB, sWS, f's{sT}')
        A(f's_lshl_b32 s{sT}, s{sPrev}, 15'); add64(A, sOutP, sOut, f's{sT}')
        l = A.label('od'); A(f's_cmp_lg_u32 s{sI}, 0'); A(f's_cbranch_scc1 {l}')
        add64(A, sOutP, sWS, WS_FDUM + 0x40000)
        A(f'{l}:')
    def g_base():
        A(f's_lshl_b32 s{sT}, s{sPrev}, 7'); A(f's_and_b32 s{sT+1}, s{sW}, 1'); A(f's_lshl_b32 s{sT+1}, s{sT+1}, 6')
        A(f's_add_u32 s{sT}, s{sT}, s{sT+1}'); A(f's_add_u32 s{sT}, s{sT}, {WS_G}'); add64(A, sA2, sWS, f's{sT}')
        A(f'v_and_b32 v{vT0}, 15, v0'); A(f'v_lshlrev_b32 v{vT0}, 2, v{vT0}')
    A(f's_mov_b32 s{sKVL}, {LW_KV0}')
    kv_setup(sSeg, sKVL)
    A(f's_mov_b32 m0, s{sKVL+1}'); A('s_nop 0')
    for i in range(4): A(f'global_load_lds_dwordx4 v{vL16}, s[{sKVn}:{sKVn+1}] offset:{1024 * i} sc1')
    A(f's_mov_b32 s{sPrev}, 0')

    def f_loop(side):
        V = Vm(); L = Lds(A)
        A('.p2align 6')
        A(f'L_f_loop{side}:')
        fst(0)
        A('s_waitcnt vmcnt(0)')
        A('s_barrier')
        fst(1)
        V.op('flr', f'global_load_dword v{vF1}, v{vFA}, s[{sFLR}:{sFLR+1}] sc1')
        A('s_mov_b64 exec, 1')
        V.op('flm', f'global_load_dword v{vF0}, v{vL16}, s[{sFLM}:{sFLM+1}] sc1')
        A('s_mov_b64 exec, -1')
        for k in range(4): A(f'v_add_u32 v{rx[k]}, s{sXL}, v{vXR[k]}')
        A(f'v_add_u32 v{vKVr}, s{sKVL}, v{vL16}')
        accQ = 32; xf = [64, 68, 72, 76]
        def xr(ks): return f'ds_read_b128 {v(xf[ks & 3], 4)}, v{rx[ks & 3]} offset:{(ks >> 2) * 1024}'
        for ks in range(3): A(xr(ks))
        A(f's_lshl_b32 s{sT}, s{sB}, 6'); A(f's_add_u32 s{sT}, s{sT}, s{sSeg}')
        A(f's_lshl_b32 s{sT}, s{sT}, 5'); A(f's_add_u32 s{sT}, s{sT}, s{sH}')
        A(f's_lshl_b32 s{sT+1}, s{sT}, 13'); A(f's_add_u32 s{sT+1}, s{sT+1}, {WS_KM}'); add64(A, sKM, sWS, f's{sT+1}')
        A(f's_add_u32 s{sT+2}, s{sSeg}, 3'); A(f's_min_u32 s{sT+2}, s{sT+2}, 63')
        A(f's_lshl_b32 s{sT}, s{sT+2}, 15'); add64(A, sA, sX, f's{sT}')
        A(f's_xor_b32 s{sT+3}, s{sXL}, {LW_X0 ^ LW_X1}')
        A(f's_lshl_b32 s{sT}, s{sW}, 13'); A(f's_add_u32 s{sT+3}, s{sT+3}, s{sT}')
        A(f's_xor_b32 s{sKVL}, s{sKVL}, {LW_KV0 ^ LW_KV1}')
        kv_setup(sT + 2, sKVL)
        A(f's_sub_u32 s{sT}, s{sI}, 1'); A(f's_and_b32 s{sT}, s{sT}, 1'); A(f's_lshl_b32 s{sT}, s{sT}, 20')
        add64(A, sRed, sFPb, f's{sT}')
        prev_bases()
        fill = {}
        def put(s_, *x): fill.setdefault(s_, []).extend(x)
        for kc in range(8):
            put(1 + kc, (lambda kc=kc: (A(f's_add_u32 m0, s{sT+3}, {kc * 1024 - kc * 128}'), A('s_nop 0'),
                                        V.op(('x', kc), f'global_load_lds_dwordx4 v{vXG}, s[{sA}:{sA+1}] offset:{kc * 128}'))))
        put(9, lambda: (A(f's_mov_b32 m0, s{sKVL+1}'), A('s_nop 0')))
        for i in range(4): put(9 + i, V.mk(('kv', i), f'global_load_lds_dwordx4 v{vL16}, s[{sKVn}:{sKVn+1}] offset:{1024 * i} sc1'))
        put(13, lambda: (V.need('flr'), check_flr(sI)))
        for i8 in range(8):
            put(14 + 2 * i8, V.mk(('red', i8), f'global_load_dwordx4 {v(RL + 4*i8, 4)}, v{vFPr}, s[{sRed}:{sRed+1}] sc1'))
            if i8 < 7: put(14 + 2 * i8, f's_add_u32 s{sRed}, s{sRed}, 4096', f's_addc_u32 s{sRed+1}, s{sRed+1}, 0')
        for ks in range(32):
            A(f's_waitcnt lgkmcnt({min(2, 31 - ks)})')
            c = '0' if ks == 0 else v(accQ, 16)
            A(f'v_mfma_f32_32x32x16_bf16 {v(accQ,16)}, {a_(4*ks,4)}, {v(xf[ks & 3],4)}, {c}')
            if ks + 3 < 32: A(xr(ks + 3))
            for x in fill.get(ks, []):
                if callable(x): x()
                else: A(x)
        fst(2)
        A(f's_add_u32 s{sT+4}, s{sSeg}, 1')
        V.need('flm')
        if not opt.get('nowaitm'): check_flm(sT + 4)
        A(f's_lshl_b32 s{sT}, s{sW}, 10'); add64(A, sA, sKM, f's{sT}')
        V.op('kmk', f'global_load_dwordx2 v[128:129], v{vL16}, s[{sA}:{sA+1}] sc1')
        A(f's_lshr_b32 s{sT}, s{sW}, 1'); A(f's_lshl_b32 s{sT}, s{sT}, 11'); add64(A, sA, sKM, f's{sT}')
        V.op('kmv0', f'global_load_dwordx2 v[130:131], v{vL16}, s[{sA}:{sA+1}] offset:8 sc1')
        V.op('kmv1', f'global_load_dwordx2 v[132:133], v{vL16}, s[{sA}:{sA+1}] offset:1032 sc1')
        for i in range(8): A(f'v_cvt_pk_bf16_f32 v{48 + i}, v{accQ + 2*i}, v{accQ + 2*i + 1}')
        A(f'ds_write_b128 v{vQw}, v[48:51]')
        A(f'ds_write_b128 v{vQw}, v[52:55] offset:512')
        fst(3)
        for i8 in range(8):
            V.need(('red', i8))
            c = '0' if i8 == 0 else v(RES, 4)
            A(f'v_mfma_f32_16x16x32_bf16 {v(RES,4)}, {v(SEL,4)}, {v(RL + 4*i8,4)}, {c}')
        KX = 80; VX = 112
        for i in range(8): A(f'ds_read_b128 {v(KX + 4*i,4)}, v{vKVr} offset:{1024 * i}')
        A(f's_lshr_b32 s{sT}, s{sW}, 1'); A(f's_lshl_b32 s{sT}, s{sT}, 12'); A(f's_add_u32 s{sT}, s{sT}, 8192')
        A(f'v_add_u32 v{vT0}, s{sT}, v{vKVr}')
        for f in range(4): A(f'ds_read_b128 {v(VX + 4*f,4)}, v{vT0} offset:{1024 * f}')
        if side == 'A':
            A(f'v_min_u32 v{RES}, -2, v{RES}')
            A('s_mov_b32 exec_hi, 0')
            V.op('ast', a_store_ins())
            A('s_mov_b64 exec, -1')
        fst(4)
        V.need('kmk')
        A(f'ds_write_b32 v{vKw}, v128')
        A(f'ds_write_b32 v{vKw}, v129 offset:512')
        A('s_waitcnt lgkmcnt(0)')
        A('s_barrier')
        qf = [64, 68, 72, 76]; kf = [136, 140, 144, 148]
        for ks in range(4): A(f'ds_read_b128 {v(qf[ks],4)}, v{vQr} offset:{ks * 2048}')
        for ks in range(4):
            for jj in range(2):
                A(f'ds_read_b64_tr_b16 {v(kf[ks] + 2*jj, 2)}, v{vKr} offset:{ks * 1024 + jj * 256}')
        V.need('kmv1')
        A('s_waitcnt lgkmcnt(8)')
        fst(5)
        S = [32, 36]; Sm = 40
        for ks in range(4):
            for kt in range(2):
                c = v(MSK + 4*kt, 4) if ks == 0 else v(S[kt], 4)
                A(f'v_mfma_f32_16x16x32_bf16 {v(S[kt],4)}, {v(KX + 4*(4*kt + ks),4)}, {v(qf[ks],4)}, {c}')
        A('s_waitcnt lgkmcnt(0)')
        for ks in range(4):
            c = '0' if ks == 0 else v(Sm, 4)
            A(f'v_mfma_f32_16x16x32_bf16 {v(Sm,4)}, {v(kf[ks],4)}, {v(qf[ks],4)}, {c}')
        if side == 'B':
            g_base()
            A('s_mov_b32 exec_hi, 0')
            V.op('ald', f'global_load_dwordx4 {v(AV,4)}, v{vAB}, s[{sAB}:{sAB+1}] sc1')
            V.op('gld', f'global_load_dword v{GV}, v{vT0}, s[{sA2}:{sA2+1}] sc1')
            A('s_mov_b64 exec, -1')
        A('s_nop 7')
        sx = [S[0] + r for r in range(4)] + [S[1] + r for r in range(4)]
        A(f'v_max3_f32 v{vT0}, v{sx[0]}, v{sx[1]}, v{sx[2]}')
        A(f'v_max3_f32 v{vT1}, v{sx[3]}, v{sx[4]}, v{sx[5]}')
        A(f'v_max3_f32 v{vT0}, v{vT0}, v{sx[6]}, v{sx[7]}')
        A(f'v_max3_f32 v{vT0}, v{vT0}, v{Sm}, v{Sm+1}')
        A(f'v_max_f32 v{vT0}, v{vT0}, v{vT1}')
        A(f'v_mov_b32 v{vT1}, v{vT0}'); A('s_nop 1')
        A(f'v_permlane16_swap_b32 v{vT0}, v{vT1}')
        A(f'v_max_f32 v{vT0}, v{vT0}, v{vT1}')
        A(f'v_mov_b32 v{vT1}, v{vT0}'); A('s_nop 1')
        A(f'v_permlane32_swap_b32 v{vT0}, v{vT1}')
        A(f'v_max_f32 v{vT0}, v{vT0}, v{vT1}')
        A(f'v_mul_f32 v{vT0}, s{sC}, v{vT0}')
        for r in sx + [Sm, Sm + 1]: A(f'v_fma_f32 v{r}, v{r}, s{sC}, -v{vT0}')
        for r in sx + [Sm, Sm + 1]: A(f'v_exp_f32 v{r}, v{r}')
        Px = 44
        A('v_mov_b32 v49, 0'); A('v_mov_b32 v50, 0')
        for i in range(4): A(f'v_cvt_pk_bf16_f32 v{Px + i}, v{sx[2*i]}, v{sx[2*i+1]}')
        A(f'v_cvt_pk_bf16_f32 v48, v{Sm}, v{Sm+1}'); A(f'v_cvt_pk_bf16_f32 v51, v{Sm}, v{Sm+1}')
        O = [152 + 4*f for f in range(4)]; lacc = 168
        A('s_nop 1')
        A(f'v_mfma_f32_16x16x32_bf16 {v(lacc,4)}, {v(ONE,4)}, {v(Px,4)}, 0')
        for f in range(4): A(f'v_mfma_f32_16x16x32_bf16 {v(O[f],4)}, {v(VX + 4*f,4)}, {v(Px,4)}, 0')
        A(f'v_mfma_f32_16x16x16_bf16 {v(lacc,4)}, {v(ONE,2)}, v[48:49], {v(lacc,4)}')
        for f in range(4):
            bop = 'v[48:49]' if f % 2 == 0 else 'v[50:51]'
            A(f'v_mfma_f32_16x16x16_bf16 {v(O[f],4)}, {v(130 + 2*(f >> 1),2)}, {bop}, {v(O[f],4)}')
        A('s_nop 7'); A('s_nop 1')
        A(f'v_rcp_f32 v{vT0}, v{lacc}'); A('s_nop 0')
        for r in range(16): A(f'v_mul_f32 v{152 + r}, v{152 + r}, v{vT0}')
        for r in range(8): A(f'v_cvt_pk_bf16_f32 v{152 + r}, v{152 + 2*r}, v{153 + 2*r}')
        A(f'ds_write_b128 v{vOw}, v[152:155]')
        A(f'ds_write_b128 v{vOw}, v[156:159] offset:2048')
        A(f's_and_b32 s{sT}, s{sI}, 1'); A(f's_lshl_b32 s{sT}, s{sT}, 20'); add64(A, sA, sFPb, f's{sT}')
        A('s_waitcnt lgkmcnt(0)')
        A('s_barrier')
        fst(6)
        of = [64 + 4*k for k in range(8)]
        for kk in range(8): A(f'ds_read_b128 {v(of[kk],4)}, v23 offset:{LW_O - 65536 + kk * 1024}')
        acc = [192 + 16*ct for ct in range(4)]
        def epi(ct):
            o = 32 + 8 * (ct & 1)
            r = [f'v_cvt_pk_bf16_f32 v{o + i}, v{acc[ct] + 2*i}, v{acc[ct] + 2*i + 1}' for i in range(8)]
            st = []
            for qq in range(2):
                st.append([lambda qq=qq, o=o, ct=ct: V.op(('fp', ct, qq), f'global_store_dwordx4 v{vFPs}, {v(o + 4*qq, 4)}, s[{sA}:{sA+1}]'),
                           f's_add_u32 s{sA}, s{sA}, 32768', f's_addc_u32 s{sA+1}, s{sA+1}, 0'])
            return r[:4] + st[0] + r[4:] + st[1]
        todo = []
        for ct in range(4):
            for kk in range(8):
                if ct == 0: A(f's_waitcnt lgkmcnt({7 - kk})')
                c = '0' if kk == 0 else v(acc[ct], 16)
                A(f'v_mfma_f32_32x32x16_bf16 {v(acc[ct],16)}, {a_(128 + (ct*8 + kk)*4,4)}, {v(of[kk],4)}, {c}')
                if ct > 0 and kk == 2: todo += epi(ct - 1)
                for _ in range(3):
                    if todo:
                        x = todo.pop(0)
                        if callable(x): x()
                        else: A(x)
        for x in todo:
            if callable(x): x()
            else: A(x)
        fst(7)
        A('s_nop 15'); A('s_nop 3')
        for x in epi(3):
            if callable(x): x()
            else: A(x)
        fst(8)
        if side == 'B':
            V.need('gld')
            b_finish(True)
        A('s_waitcnt vmcnt(0)')
        A('s_barrier')
        fst(9)
        fst_acc()
        l = A.label('noflr')
        A(f's_cmp_lg_u32 s{sW}, 0'); A(f's_cbranch_scc1 {l}')
        A(f's_add_u32 s{sT}, s{sI}, 1')
        A(f'v_mov_b32 v{vT0}, s{sT}'); A(f's_lshl_b32 s{sT}, s{sH}, 2'); A(f'v_mov_b32 v{vT1}, s{sT}')
        A('s_mov_b64 exec, 1')
        A(f'global_store_dword v{vT1}, v{vT0}, s[{sFLR}:{sFLR+1}]')
        A('s_mov_b64 exec, -1')
        A(f'{l}:')
        to2 = dict(opt); to2['tracev'] = ('v8', 'v9')
        trace(A, to2, 8, dyn=sI)
        A(f's_mov_b32 s{sPrev}, s{sSeg}')
        A(f's_add_u32 s{sSeg}, s{sSeg}, 3')
        A(f's_xor_b32 s{sXL}, s{sXL}, {LW_X0 ^ LW_X1}')
        A(f's_add_u32 s{sI}, s{sI}, 1')
        A(f's_cmp_lt_u32 s{sI}, s{sN}')
        A(f's_cbranch_scc1 L_f_loop{side}')
        lp = A.label('lastflr')
        A(f'{lp}:')
        A(f'global_load_dword v{vF1}, v{vFA}, s[{sFLR}:{sFLR+1}] sc1')
        A('s_waitcnt vmcnt(0)')
        A(f'v_cmp_gt_u32 vcc, s{sI}, v{vF1}')
        timeout_check(A, 'L_fail')
        A(f's_cbranch_vccnz {lp}')
        A(f's_sub_u32 s{sT}, s{sI}, 1'); A(f's_and_b32 s{sT}, s{sT}, 1'); A(f's_lshl_b32 s{sT}, s{sT}, 20')
        add64(A, sRed, sFPb, f's{sT}')
        for i8 in range(8):
            A(f'global_load_dwordx4 {v(RL + 4*i8, 4)}, v{vFPr}, s[{sRed}:{sRed+1}] sc1')
            if i8 < 7: add64(A, sRed, sRed, 4096)
        prev_bases()
        if side == 'B':
            g_base()
            A('s_mov_b32 exec_hi, 0')
            A(f'global_load_dwordx4 {v(AV,4)}, v{vAB}, s[{sAB}:{sAB+1}] sc1')
            A(f'global_load_dword v{GV}, v{vT0}, s[{sA2}:{sA2+1}] sc1')
            A('s_mov_b64 exec, -1')
        y = 2 if side == 'B' else 0
        for i8 in range(8):
            A(f's_waitcnt vmcnt({y + 7 - i8})')
            c = '0' if i8 == 0 else v(RES, 4)
            A(f'v_mfma_f32_16x16x32_bf16 {v(RES,4)}, {v(SEL,4)}, {v(RL + 4*i8,4)}, {c}')
        A('s_nop 7'); A('s_nop 1')
        if side == 'A':
            A(f'v_min_u32 v{RES}, -2, v{RES}')
            A('s_mov_b32 exec_hi, 0')
            A(a_store_ins())
            A('s_mov_b64 exec, -1')
        else:
            A('s_waitcnt vmcnt(0)')
            b_finish(False)
        A('s_waitcnt vmcnt(0)')
        to2 = dict(opt); to2['tracev'] = ('v8', 'v9')
        trace(A, to2, 4)
        if opt.get('fstamps'):
            A(f's_lshl_b32 s{sT}, s{sXCC}, 5'); A(f's_add_u32 s{sT}, s{sT}, s{sH}'); A(f's_lshl_b32 s{sT}, s{sT}, 2'); A(f's_add_u32 s{sT}, s{sT}, s{sW}')
            A(f's_lshl_b32 s{sT}, s{sT}, 6'); A(f's_add_u32 s{sT}, s{sT}, 0x06900000')
            A(f'v_mov_b32 v8, s{sT}'); A('s_mov_b64 exec, 1')
            for i in range(NF):
                A(f'v_mov_b32 v9, s{84 + i}'); A(f'global_store_dword v8, v9, s[{sWS}:{sWS+1}] offset:{4*i}')
            A('s_waitcnt vmcnt(0)')
        A('s_endpgm')
    A(f's_cmp_eq_u32 s{sB}, 1'); A('s_cbranch_scc1 L_f_sideB')
    f_loop('A')
    A('L_f_sideB:')
    f_loop('B')
    for kind, ls, lb, need in slow:
        A(f'{ls}:')
        if kind == 'flr':
            A(f'global_load_dword v{vF1}, v{vFA}, s[{sFLR}:{sFLR+1}] sc1')
            A('s_waitcnt vmcnt(0)')
            A(f'v_cmp_gt_u32 vcc, s{need}, v{vF1}')
            timeout_check(A, 'L_fail')
            A(f's_cbranch_vccnz {ls}')
        else:
            A('s_mov_b64 exec, 1')
            A(f'global_load_dword v{vF0}, v{vL16}, s[{sFLM}:{sFLM+1}] sc1')
            A('s_mov_b64 exec, -1')
            A('s_waitcnt vmcnt(0)')
            A(f'v_readfirstlane_b32 s{sT+5}, v{vF0}')
            timeout_check(A, 'L_fail')
            A(f's_cmp_lt_u32 s{sT+5}, s{need}')
            A(f's_cbranch_scc1 {ls}')
        A(f's_branch {lb}')
```

```python
from asmlib import *
from chain import (WS_KV, WS_KM, sWS, sDBG, sW, sH, sB, sTO, add64, timeout_check, f32bits, Lds, SM_SCALE_LOG2E)

WS_FLK = 0x07000000
WS_FLM = 0x07001000
WS_FLR = 0x07003000
WS_FLA = 0x07004000
WS_G   = 0x07010000
WS_FP  = 0x07100000
WS_AB  = 0x08200000
LW_X0  = 0
LW_X1  = 32768
LW_Q   = 65536
LW_O   = 73728
LW_K   = 81920
LW_KV0 = 86016
LW_KV1 = 102400
WS_FDUM = 0x08700000
LW_STG = 32768
sR = 13
sXCC = 3
sA = 14; sA2 = 16
sX = 18
sSeg = 20
sI = 21
sN = 22
sT = 54
sXL = 23
sKVo = 24
vL16 = 1
vXG = 2
vXR = [4, 5, 6, 7]
vT0, vT1 = 8, 9

def x_setup(A):
    A(f'v_lshlrev_b32 v{vL16}, 4, v0')
    A(f'v_lshrrev_b32 v{vT0}, 3, v0')
    A(f's_lshl_b32 s{sT}, s{sW}, 3')
    A(f'v_add_u32 v{vT0}, s{sT}, v{vT0}')
    A(f'v_bfe_u32 v{vT1}, v{vT0}, 1, 3')
    A(f'v_and_b32 v{vXG}, 7, v0')
    A(f'v_xor_b32 v{vXG}, v{vXG}, v{vT1}')
    A(f'v_lshlrev_b32 v{vXG}, 4, v{vXG}')
    A(f'v_lshl_add_u32 v{vXG}, v{vT0}, 10, v{vXG}')
    A(f'v_and_b32 v{vT0}, 31, v0')
    A(f'v_bfe_u32 v{vT1}, v{vT0}, 1, 3')
    A(f'v_lshrrev_b32 v10, 5, v0')
    A(f'v_xor_b32 v{vT1}, v{vT1}, v10')
    A(f'v_lshlrev_b32 v{vT1}, 4, v{vT1}')
    A(f'v_and_b32 v10, 7, v{vT0}')
    A(f'v_lshl_add_u32 v{vT1}, v10, 7, v{vT1}')
    A(f'v_lshrrev_b32 v10, 3, v{vT0}')
    A(f'v_lshl_add_u32 v{vXR[0]}, v10, 13, v{vT1}')
    for k in range(1, 4): A(f'v_xor_b32 v{vXR[k]}, {32 * k}, v{vXR[0]}')

def x_dma(A, seg_sgpr, lds_base):
    A(f's_lshl_b32 s{sT}, s{seg_sgpr}, 15')
    add64(A, sA, sX, f's{sT}')
    A(f's_lshl_b32 s{sT}, s{sW}, 13')
    A(f's_add_u32 s{sT}, s{sT}, {lds_base}')
    for kc in range(8):
        A(f's_add_u32 m0, s{sT}, {kc * 1024 - kc * 128}')
        A('s_nop 0')
        A(f'global_load_lds_dwordx4 v{vXG}, s[{sA}:{sA+1}] offset:{kc * 128}')

def load_qkv_weights(A, w, srcs, dsts, nt='nt', depth=8):
    vG = [12, 13, 14, 15]; vR = 16
    A(f'v_lshrrev_b32 v{vT0}, 4, v0')
    A(f'v_lshlrev_b32 v{vT1}, 2, v{vT0}')
    A(f'v_and_b32 v10, 15, v0')
    A(f'v_xor_b32 v10, v10, v{vT1}')
    A(f'v_lshlrev_b32 v10, 4, v10')
    A(f'v_add_u32 v{vT0}, {16 * w}, v{vT0}')
    A(f'v_lshl_add_u32 v{vG[0]}, v{vT0}, 13, v10')
    for ii in range(1, 4): A(f'v_add_u32 v{vG[ii]}, {ii * 32768}, v{vG[0]}')
    A(f'v_bfe_u32 v{vT0}, v0, 2, 2')
    A(f'v_xor_b32 v{vT1}, {w}, v{vT0}')
    A(f'v_lshlrev_b32 v{vT1}, 6, v{vT1}')
    A(f'v_lshrrev_b32 v10, 5, v0')
    A(f'v_lshl_add_u32 v{vT0}, v10, 3, v{vT0}')
    A(f'v_lshl_add_u32 v{vT1}, v{vT0}, 8, v{vT1}')
    A(f'v_bfe_u32 v10, v0, 4, 1')
    A(f'v_lshl_add_u32 v{vT1}, v10, 5, v{vT1}')
    A(f'v_and_b32 v10, 3, v0')
    A(f'v_lshl_add_u32 v11, v10, 3, v{vT1}')
    def dma(m, c):
        add64(A, sA, srcs[m], c * 64 * 8192)
        for ii in range(4):
            A(f's_mov_b32 m0, {LW_STG + c * 16384 + w * 4096 + ii * 1024}')
            A('s_nop 0')
            A(f'global_load_lds_dwordx4 v{vG[ii]}, s[{sA}:{sA+1}] {nt}')
    seq_ = [(m, c) for m in range(len(srcs)) for c in range(8)]
    for k in range(depth): dma(*seq_[k])
    for k, (m, c) in enumerate(seq_):
        inflight = min(depth, len(seq_) - k)
        A(f's_waitcnt vmcnt({(inflight - 1) * 4})')
        A('s_barrier')
        A(f'v_add_u32 v{vR}, {LW_STG + c * 16384}, v11')
        for ksl in range(4):
            for jj in range(2):
                r = dsts[m] + (4 * c + ksl) * 4 + 2 * jj
                A(f'ds_read_b64_tr_b16 {a_(r, 2)}, v{vR} offset:{ksl * 4096 + jj * 1024}')
        A('s_waitcnt lgkmcnt(0)')
        A('s_barrier')
        if k + depth < len(seq_): dma(*seq_[k + depth])

def p1_phase(A, opt):
    K = {'Wk': 60, 'Wv': 62}
    A('L_p1:')
    A(f's_mul_i32 s{sT}, s{sB}, 56')
    A(f's_add_u32 s{sA}, s0, s{sT}')
    A(f's_addc_u32 s{sA+1}, s1, 0')
    A(f's_load_dwordx4 s[60:63], s[{sA}:{sA+1}], 24')
    A(f's_load_dwordx2 s[{sX}:{sX+1}], s[0:1], 0')
    A('s_waitcnt lgkmcnt(0)')
    A(f's_lshl_b32 s{sT}, s{sH}, 8')
    for m in K: add64(A, K[m], K[m], f's{sT}')
    x_setup(A)
    A.c('first x tile into buffer 0 (outside the staging area)')
    A(f's_mov_b32 s{sSeg}, s{sR}')
    x_dma(A, sSeg, LW_X0)
    lend = A.label('p1w'); labs = [A.label(f'p1w{w}') for w in range(4)]
    for w in range(1, 4):
        A(f's_cmp_eq_u32 s{sW}, {w}'); A(f's_cbranch_scc1 {labs[w]}')
    for w in range(4):
        A(f'{labs[w]}:')
        load_qkv_weights(A, w, [K['Wk'], K['Wv']], [0, 128], opt.get('wnt', 'nt'), opt.get('wdepth', 8))
        if w < 3: A(f's_branch {lend}')
    A(f'{lend}:')
    to = dict(opt); to['tracev'] = ('v30', 'v31')
    trace(A, to, 1)
    vKs, vVs = 10, 11
    A(f'v_and_b32 v{vT0}, 15, v0')
    A(f'v_lshrrev_b32 v{vT1}, 5, v0')
    A(f'v_lshl_add_u32 v{vT0}, v{vT1}, 4, v{vT0}')
    A(f'v_lshlrev_b32 v{vT0}, 4, v{vT0}')
    A(f'v_bfe_u32 v{vT1}, v0, 4, 1')
    A(f'v_lshl_add_u32 v{vKs}, v{vT1}, 12, v{vT0}')
    A(f's_lshl_b32 s{sT}, s{sW}, 10')
    A(f'v_add_u32 v{vKs}, s{sT}, v{vKs}')
    A(f'v_lshl_add_u32 v{vVs}, v{vT1}, 10, v{vT0}')
    A(f's_lshl_b32 s{sT}, s{sW}, 11')
    A(f's_add_u32 s{sT}, s{sT}, 8192')
    A(f'v_add_u32 v{vVs}, s{sT}, v{vVs}')
    A(f's_cmp_eq_u32 s{sR}, 0')
    A(f's_cselect_b32 s{sN}, 22, 21')
    A(f's_mov_b32 s{sI}, 0')
    A(f's_mov_b32 s{sXL}, {LW_X0}')
    sFl = 26
    A(f's_lshl_b32 s{sT}, s{sB}, 5'); A(f's_add_u32 s{sT}, s{sT}, s{sH}')
    A(f's_lshl_b32 s{sT}, s{sT}, 4')
    A(f's_lshl_b32 s{sT+1}, s{sR}, 2'); A(f's_add_u32 s{sT}, s{sT}, s{sT+1}')
    A(f's_add_u32 s{sT}, s{sT}, {WS_FLK}')
    add64(A, sFl, sWS, f's{sT}')
    accK, accV = 32, 48
    xf = [64, 68, 72, 76]
    ok = 16; ov = 24
    A('.p2align 6')
    A('L_p1_loop:')
    A('s_waitcnt vmcnt(4)')
    A('s_barrier')
    l = A.label('nofl')
    A(f's_cmp_lt_u32 s{sI}, 2'); A(f's_cbranch_scc1 {l}')
    A(f's_cmp_lg_u32 s{sW}, 0'); A(f's_cbranch_scc1 {l}')
    A(f's_sub_u32 s{sT}, s{sI}, 1')
    A(f'v_mov_b32 v{vT0}, s{sT}'); A(f'v_mov_b32 v{vT1}, 0')
    A('s_mov_b64 exec, 1')
    A(f'global_store_dword v{vT1}, v{vT0}, s[{sFl}:{sFl+1}] sc1')
    A('s_mov_b64 exec, -1')
    A(f'{l}:')
    l = A.label('nonext')
    A(f's_add_u32 s{sT+2}, s{sI}, 1')
    A(f's_cmp_ge_u32 s{sT+2}, s{sN}'); A(f's_cbranch_scc1 {l}')
    A(f's_add_u32 s{sT+2}, s{sSeg}, 3')
    A(f's_xor_b32 s{sT+3}, s{sXL}, {LW_X0 ^ LW_X1}')
    x_dma(A, sT + 2, f's{sT+3}')
    A(f'{l}:')
    A(f's_lshl_b32 s{sT}, s{sB}, 6'); A(f's_add_u32 s{sT}, s{sT}, s{sSeg}')
    A(f's_lshl_b32 s{sT}, s{sT}, 5'); A(f's_add_u32 s{sT}, s{sT}, s{sH}')
    A(f's_lshl_b32 s{sT}, s{sT}, 14')
    add64(A, sKVo, sWS, f's{sT}')
    rx = [12, 13, 14, 15]
    for k in range(4): A(f'v_add_u32 v{rx[k]}, s{sXL}, v{vXR[k]}')
    def xr(ks): return f'ds_read_b128 {v(xf[ks & 3], 4)}, v{rx[ks & 3]} offset:{(ks >> 2) * 1024}'
    for ks in range(3): A(xr(ks))
    for ks in range(32):
        A(f's_waitcnt lgkmcnt({min(2, 31 - ks)})')
        ck = '0' if ks == 0 else v(accK, 16); cv = '0' if ks == 0 else v(accV, 16)
        A(f'v_mfma_f32_32x32x16_bf16 {v(accK,16)}, {a_(4*ks,4)}, {v(xf[ks & 3],4)}, {ck}')
        A(f'v_mfma_f32_32x32x16_bf16 {v(accV,16)}, {v(xf[ks & 3],4)}, {a_(128 + 4*ks,4)}, {cv}')
        if ks + 3 < 32: A(xr(ks + 3))
    A('s_nop 15'); A('s_nop 3')
    for i in range(8): A(f'v_cvt_pk_bf16_f32 v{ok + i}, v{accK + 2*i}, v{accK + 2*i + 1}')
    A(f'global_store_dwordx4 v{vKs}, {v(ok,4)}, s[{sKVo}:{sKVo+1}] sc1')
    A(f'global_store_dwordx4 v{vKs}, {v(ok+4,4)}, s[{sKVo}:{sKVo+1}] offset:512 sc1')
    for gq, qs in enumerate([(0, 2), (1, 3)]):
        for z, q in enumerate(qs):
            A(f'v_cvt_pk_bf16_f32 v{ov + 4*gq + 2*z}, v{accV + 4*q}, v{accV + 4*q + 1}')
            A(f'v_cvt_pk_bf16_f32 v{ov + 4*gq + 2*z + 1}, v{accV + 4*q + 2}, v{accV + 4*q + 3}')
    A(f'global_store_dwordx4 v{vVs}, {v(ov,4)}, s[{sKVo}:{sKVo+1}] sc1')
    A(f'global_store_dwordx4 v{vVs}, {v(ov+4,4)}, s[{sKVo}:{sKVo+1}] offset:512 sc1')
    if opt.get('gate', 1): gate_part(A, opt)
    A(f's_add_u32 s{sSeg}, s{sSeg}, 3')
    A(f's_xor_b32 s{sXL}, s{sXL}, {LW_X0 ^ LW_X1}')
    A(f's_add_u32 s{sI}, s{sI}, 1')
    A(f's_cmp_lt_u32 s{sI}, s{sN}')
    A('s_cbranch_scc1 L_p1_loop')
    trace(A, to, 2)
    A('s_waitcnt vmcnt(0)')
    A('s_barrier')
    l = A.label('nofl2')
    A(f's_cmp_lg_u32 s{sW}, 0'); A(f's_cbranch_scc1 {l}')
    A(f'v_mov_b32 v{vT0}, s{sN}'); A(f'v_mov_b32 v{vT1}, 0')
    A('s_mov_b64 exec, 1')
    A(f'global_store_dword v{vT1}, v{vT0}, s[{sFl}:{sFl+1}] sc1')
    A('s_mov_b64 exec, -1')
    A(f'{l}:')

def worker_clear(A):
    A(f'v_mov_b32 v{vT1}, 0')
    A('s_mov_b64 exec, 1')
    A(f's_lshl_b32 s{sT}, s{sB}, 5'); A(f's_add_u32 s{sT}, s{sT}, s{sH}'); A(f's_lshl_b32 s{sT}, s{sT}, 4')
    A(f's_lshl_b32 s{sT+1}, s{sR}, 2'); A(f's_add_u32 s{sT}, s{sT}, s{sT+1}'); A(f's_add_u32 s{sT}, s{sT}, {WS_FLK}')
    A(f'v_mov_b32 v{vT0}, s{sT}'); A(f'global_store_dword v{vT0}, v{vT1}, s[{sWS}:{sWS+1}] sc1')
    A(f's_lshl_b32 s{sT}, s{sXCC}, 5'); A(f's_add_u32 s{sT}, s{sT}, s{sH}'); A(f's_lshl_b32 s{sT}, s{sT}, 2')
    A(f's_add_u32 s{sT}, s{sT}, {WS_FLR}')
    A(f'v_mov_b32 v{vT0}, s{sT}'); A(f'global_store_dword v{vT0}, v{vT1}, s[{sWS}:{sWS+1}]')
    A('s_mov_b64 exec, -1')
    l = A.label('nopoi')
    A(f's_cmp_lg_u32 s{sB}, 1'); A(f's_cbranch_scc1 {l}')
    A('v_mov_b64 v[12:13], -1'); A('v_mov_b64 v[14:15], -1')
    A(f's_lshl_b32 s{sT}, s{sH}, 11'); A(f's_lshl_b32 s{sT+1}, s{sW}, 9'); A(f's_add_u32 s{sT}, s{sT}, s{sT+1}')
    A(f's_lshl_b32 s{sT+1}, s{sR}, 16'); A(f's_add_u32 s{sT}, s{sT}, s{sT+1}'); A(f's_add_u32 s{sT}, s{sT}, {WS_AB}')
    A(f'v_lshlrev_b32 v{vT0}, 4, v0'); A(f'v_add_u32 v{vT0}, s{sT}, v{vT0}')
    A('s_mov_b32 exec_hi, 0')
    for i in range(22):
        if i == 21:
            l2 = A.label('nolast'); A(f's_cmp_lg_u32 s{sR}, 0'); A(f's_cbranch_scc1 {l2}')
        A(f'global_store_dwordx4 v{vT0}, v[12:15], s[{sWS}:{sWS+1}] sc1')
        A(f'v_add_u32 v{vT0}, {3 * 65536}, v{vT0}')
        if i == 21: A(f'{l2}:')
    A('s_mov_b64 exec, -1')
    A(f'{l}:')
    A('s_waitcnt vmcnt(0)')
    A('s_barrier')
    A('s_mov_b64 exec, 1')
    l = A.label('noann')
    A(f's_cmp_lg_u32 s{sW}, 0'); A(f's_cbranch_scc1 {l}')
    A(f's_lshl_b32 s{sT}, s{sXCC}, 2'); A(f's_add_u32 s{sT}, s{sT}, 32')
    A(f'v_mov_b32 v{vT0}, s{sT}'); A(f'v_mov_b32 v{vT1}, 1')
    A(f'global_atomic_add v{vT0}, v{vT1}, s[{sDBG}:{sDBG+1}] sc1')
    A(f'{l}:')
    A('s_mov_b64 exec, -1')

def wait_cleared(A):
    lw = A.label('wclr')
    A(f'v_and_b32 v{vT0}, 7, v0'); A(f'v_lshlrev_b32 v{vT0}, 2, v{vT0}'); A(f'v_add_u32 v{vT0}, 32, v{vT0}')
    A(f'{lw}:')
    A(f'global_load_dword v{vT1}, v{vT0}, s[{sDBG}:{sDBG+1}] sc1')
    A('s_waitcnt vmcnt(0)')
    A(f'v_cmp_gt_u32 vcc, 32, v{vT1}')
    timeout_check(A, 'L_fail')
    A(f's_cbranch_vccnz {lw}')

def gate_part(A, opt):
    l = A.label('nogate')
    A(f's_cmp_lg_u32 s{sB}, 1'); A(f's_cbranch_scc1 {l}')
    A(f's_cmp_lg_u32 s{sH}, s{sI}'); A(f's_cbranch_scc1 {l}')
    A(f's_cmp_lg_u32 s{sW}, 0'); A(f's_cbranch_scc1 {l}')
    A(f's_load_dwordx2 s[{sA2}:{sA2+1}], s[0:1], 112')
    acc = 32; gw = 80; xf = 64
    A(f'v_lshrrev_b32 v{vT0}, 5, v0'); A(f'v_lshlrev_b32 v{vT0}, 4, v{vT0}')
    A('s_waitcnt lgkmcnt(0)')
    for half in range(2):
        for q in range(16):
            ks = 16 * half + q
            A(f'global_load_dwordx4 {v(gw + 4*q, 4)}, v{vT0}, s[{sA2}:{sA2+1}] offset:{ks * 32}')
        A('s_waitcnt vmcnt(0)')
        for q in range(16):
            ks = 16 * half + q
            A(f'ds_read_b128 {v(xf,4)}, v{12 + (ks & 3)} offset:{(ks >> 2) * 1024}')
            A('s_waitcnt lgkmcnt(0)')
            c = '0' if ks == 0 else v(acc, 16)
            A(f'v_mfma_f32_32x32x16_bf16 {v(acc,16)}, {v(gw + 4*q,4)}, {v(xf,4)}, {c}')
    A('s_nop 15'); A('s_nop 3')
    A(f'v_mul_f32 v{vT0}, 0xbfb8aa3b, v{acc}')
    A(f'v_exp_f32 v{vT0}, v{vT0}')
    A('s_nop 0')
    A(f'v_add_f32 v{vT0}, 1.0, v{vT0}')
    A(f'v_rcp_f32 v{vT0}, v{vT0}')
    A(f's_lshl_b32 s{sT}, s{sSeg}, 7'); A(f's_add_u32 s{sT}, s{sT}, {WS_G}')
    add64(A, sA2, sWS, f's{sT}')
    A(f'v_lshlrev_b32 v{vT1}, 2, v0')
    A('s_mov_b32 exec_hi, 0')
    A(f'global_store_dword v{vT1}, v{vT0}, s[{sA2}:{sA2+1}]')
    A('s_mov_b64 exec, -1')
    A('s_waitcnt vmcnt(0)')
    A(f'{l}:')


def load_f_weights(A, w, sWq, sWo, nt='nt'):
    vG = [12, 13, 14, 15]; vR = 16
    A(f'v_lshrrev_b32 v{vT0}, 4, v0')
    A(f'v_lshlrev_b32 v{vT1}, 2, v{vT0}')
    A(f'v_and_b32 v10, 15, v0')
    A(f'v_xor_b32 v10, v10, v{vT1}')
    A(f'v_lshlrev_b32 v10, 4, v10')
    A(f'v_add_u32 v{vT0}, {16 * w}, v{vT0}')
    A(f'v_lshl_add_u32 v{vG[0]}, v{vT0}, 13, v10')
    for ii in range(1, 4): A(f'v_add_u32 v{vG[ii]}, {ii * 32768}, v{vG[0]}')
    A(f'v_bfe_u32 v{vT0}, v0, 2, 2')
    A(f'v_xor_b32 v{vT1}, {w}, v{vT0}')
    A(f'v_lshlrev_b32 v{vT1}, 6, v{vT1}')
    A(f'v_lshrrev_b32 v10, 5, v0')
    A(f'v_lshl_add_u32 v17, v10, 3, v{vT0}')
    A(f'v_lshl_add_u32 v{vT1}, v17, 8, v{vT1}')
    A(f'v_bfe_u32 v17, v0, 4, 1')
    A(f'v_lshl_add_u32 v{vT1}, v17, 5, v{vT1}')
    A(f'v_and_b32 v18, 3, v0')
    A(f'v_lshl_add_u32 v11, v18, 3, v{vT1}')
    A(f'v_lshl_add_u32 v19, v10, 2, v{vT0}')
    A(f'v_lshlrev_b32 v19, 10, v19')
    A(f'v_lshl_add_u32 v19, v{vT0}, 6, v19')
    A(f'v_lshl_add_u32 v19, v17, 5, v19')
    A(f'v_lshl_add_u32 v19, v18, 3, v19')
    A(f'v_add_u32 v19, {LW_STG + 256 * w}, v19')
    def dma_q(c):
        add64(A, sA, sWq, c * 64 * 8192)
        for ii in range(4):
            A(f's_mov_b32 m0, {LW_STG + c * 16384 + w * 4096 + ii * 1024}')
            A('s_nop 0')
            A(f'global_load_lds_dwordx4 v{vG[ii]}, s[{sA}:{sA+1}] {nt}')
    def dma_o(c):
        for ii in range(4):
            e = 16 * c + 4 * w + ii
            add64(A, sA, sWo, e * 1024)
            A(f'v_xor_b32 v20, {64 * (e & 3)}, v{vL16}')
            A(f's_mov_b32 m0, {LW_STG + e * 1024}')
            A('s_nop 0')
            A(f'global_load_lds_dwordx4 v20, s[{sA}:{sA+1}] {nt}')
    for c in range(8): dma_q(c)
    for c in range(8):
        A('s_waitcnt vmcnt(28)')
        A('s_barrier')
        A(f'v_add_u32 v{vR}, {LW_STG + c * 16384}, v11')
        for ksl in range(4):
            for jj in range(2):
                A(f'ds_read_b64_tr_b16 {a_((4 * c + ksl) * 4 + 2 * jj, 2)}, v{vR} offset:{ksl * 4096 + jj * 1024}')
        A('s_waitcnt lgkmcnt(0)')
        A('s_barrier')
        dma_o(c)
    for tp in range(4):
        A(f's_waitcnt vmcnt({(3 - tp) * 8})')
        A('s_barrier')
        for ct in range(4):
            A(f'v_xor_b32 v{vR}, {64 * ct}, v19')
            A(f'v_add_u32 v{vR}, {tp * 32768}, v{vR}')
            for z in range(2):
                for jj in range(2):
                    kk = 2 * tp + z
                    A(f'ds_read_b64_tr_b16 {a_(128 + (ct * 8 + kk) * 4 + 2 * jj, 2)}, v{vR} offset:{z * 8192 + jj * 16384}')
        A('s_waitcnt lgkmcnt(0)')
    A('s_barrier')

def f_phase(A, opt):
    vQw, vKw, vOw, vFPs, vFPr, vOut, vKr, vQr, vAB = 10, 11, 16, 17, 18, 19, 20, 21, 22
    rx = [12, 13, 14, 15]
    MSK = 24
    ONE = 172; SEL = 176
    sWq, sWo = 60, 62
    sOut = 26; sFPb = 28; sFLR = 30; sFLM = 32; sFLA = 34; sKM = 36; sC = 48; sPrev = 38; sSlot = 39; sEX32 = 50
    A('L_f:')
    A(f's_mul_i32 s{sT}, s{sB}, 56')
    A(f's_add_u32 s{sA}, s0, s{sT}')
    A(f's_addc_u32 s{sA+1}, s1, 0')
    A(f's_load_dwordx2 s[{sWq}:{sWq+1}], s[{sA}:{sA+1}], 16')
    A(f's_load_dwordx2 s[{sWo}:{sWo+1}], s[{sA}:{sA+1}], 40')
    A(f's_load_dwordx2 s[{sOut}:{sOut+1}], s[0:1], 120')
    A(f's_load_dwordx2 s[{sX}:{sX+1}], s[0:1], 0')
    A('s_waitcnt lgkmcnt(0)')
    A(f's_lshl_b32 s{sT}, s{sH}, 8'); add64(A, sWq, sWq, f's{sT}')
    A(f's_lshl_b32 s{sT}, s{sH}, 17'); add64(A, sWo, sWo, f's{sT}')
    x_setup(A)
    A(f's_mov_b32 s{sSeg}, s{sR}')
    x_dma(A, sSeg, LW_X0)
    lend = A.label('fw'); labs = [A.label(f'fw{w}') for w in range(4)]
    for w in range(1, 4):
        A(f's_cmp_eq_u32 s{sW}, {w}'); A(f's_cbranch_scc1 {labs[w]}')
    for w in range(4):
        A(f'{labs[w]}:')
        load_f_weights(A, w, sWq, sWo, opt.get('wnt', 'nt'))
        if w < 3: A(f's_branch {lend}')
    A(f'{lend}:')
    to = dict(opt); to['tracev'] = ('v30', 'v31')
    trace(A, to, 3)
    n32, g2 = 32, 33
    A(f'v_and_b32 v{n32}, 31, v0'); A(f'v_lshrrev_b32 v{g2}, 5, v0')
    A(f'v_and_b32 v34, 15, v0'); A(f'v_lshrrev_b32 v35, 4, v0')
    A(f'v_lshl_add_u32 v{vT0}, v{g2}, 4, v34'); A(f'v_lshlrev_b32 v{vT0}, 4, v{vT0}')
    A(f'v_bfe_u32 v{vT1}, v0, 4, 1'); A(f'v_lshl_add_u32 v{vT0}, v{vT1}, 10, v{vT0}')
    A(f's_lshl_b32 s{sT}, s{sW}, 11'); A(f's_add_u32 s{sT}, s{sT}, {LW_Q}')
    A(f'v_add_u32 v{vQw}, s{sT}, v{vT0}')
    A(f's_and_b32 s{sT}, s{sW}, 1'); A(f's_lshl_b32 s{sT}, s{sT}, 10'); A(f's_add_u32 s{sT}, s{sT}, {LW_Q}')
    A(f'v_add_u32 v{vQr}, s{sT}, v{vL16}')
    A(f's_lshl_b32 s{sT}, s{sW}, 5'); A(f'v_add_u32 v{vT0}, s{sT}, v34')
    A(f'v_lshlrev_b32 v{vT0}, 5, v{vT0}'); A(f'v_lshl_add_u32 v{vT0}, v35, 3, v{vT0}')
    A(f'v_add_u32 v{vKw}, {LW_K}, v{vT0}')
    A(f'v_bfe_u32 v{vT0}, v0, 5, 1'); A(f'v_lshlrev_b32 v{vT0}, 4, v{vT0}')
    A(f'v_bfe_u32 v{vT1}, v0, 4, 1'); A(f'v_lshl_add_u32 v{vT0}, v{vT1}, 2, v{vT0}')
    A(f'v_bfe_u32 v{vT1}, v0, 2, 2'); A(f'v_add_u32 v{vT0}, v{vT0}, v{vT1}')
    A(f'v_and_b32 v{vT1}, 3, v0'); A(f'v_lshlrev_b32 v{vT1}, 3, v{vT1}')
    A(f'v_lshl_add_u32 v{vT0}, v{vT0}, 5, v{vT1}'); A(f'v_add_u32 v{vKr}, {LW_K}, v{vT0}')
    A(f'v_lshrrev_b32 v{vT0}, 1, v35'); A(f'v_lshlrev_b32 v{vT0}, 10, v{vT0}')
    A(f'v_and_b32 v{vT1}, 1, v35'); A(f'v_lshl_add_u32 v{vT1}, v{vT1}, 5, v34')
    A(f'v_lshl_add_u32 v{vT0}, v{vT1}, 4, v{vT0}')
    A(f's_lshr_b32 s{sT}, s{sW}, 1'); A(f's_lshl_b32 s{sT}, s{sT}, 12')
    A(f's_and_b32 s{sT+1}, s{sW}, 1'); A(f's_lshl_b32 s{sT+1}, s{sT+1}, 8')
    A(f's_add_u32 s{sT}, s{sT}, s{sT+1}'); A(f's_add_u32 s{sT}, s{sT}, {LW_O}')
    A(f'v_add_u32 v{vOw}, s{sT}, v{vT0}')
    A(f's_lshl_b32 s{sT}, s{sW}, 18'); A(f's_lshl_b32 s{sT+1}, s{sH}, 10'); A(f's_add_u32 s{sT}, s{sT}, s{sT+1}')
    A(f'v_add_u32 v{vFPs}, s{sT}, v{vL16}')
    A(f's_lshr_b32 s{sT}, s{sW}, 1'); A(f's_lshl_b32 s{sT}, s{sT}, 5')
    A(f's_and_b32 s{sT+1}, s{sW}, 1'); A(f's_lshl_b32 s{sT+1}, s{sT+1}, 4'); A(f's_add_u32 s{sT}, s{sT}, s{sT+1}')
    A(f'v_add_u32 v{vT0}, s{sT}, v34'); A(f'v_lshlrev_b32 v{vT0}, 4, v{vT0}')
    A(f'v_lshl_add_u32 v{vT0}, v35, 10, v{vT0}')
    A(f's_lshl_b32 s{sT}, s{sH}, 15'); A(f'v_add_u32 v{vFPr}, s{sT}, v{vT0}')
    A(f's_and_b32 s{sT}, s{sW}, 1'); A(f's_lshl_b32 s{sT}, s{sT}, 4'); A(f'v_add_u32 v{vT0}, s{sT}, v34')
    A(f'v_lshlrev_b32 v{vT0}, 10, v{vT0}'); A(f'v_lshl_add_u32 v{vT0}, v35, 4, v{vT0}')
    A(f's_lshl_b32 s{sT}, s{sH}, 5'); A(f's_lshr_b32 s{sT+1}, s{sW}, 1'); A(f's_lshl_b32 s{sT+1}, s{sT+1}, 3')
    A(f's_add_u32 s{sT}, s{sT}, s{sT+1}'); A(f'v_add_u32 v{vOut}, s{sT}, v{vT0}')
    A(f's_lshl_b32 s{sT}, s{sH}, 11'); A(f's_lshl_b32 s{sT+1}, s{sW}, 9'); A(f's_add_u32 s{sT}, s{sT}, s{sT+1}')
    A(f'v_add_u32 v{vAB}, s{sT}, v{vL16}')
    A(f'v_add_u32 v23, 65536, v{vL16}')
    A(f's_and_b32 s{sT}, s{sW}, 1'); A(f's_lshl_b32 s{sT}, s{sT}, 4'); A(f'v_add_u32 v{vT0}, s{sT}, v34')
    A(f'v_lshlrev_b32 v{vT1}, 2, v35')
    A(f'v_mov_b32 v36, 0xf149f2ca')
    for kt in range(2):
        for r in range(4):
            A(f'v_add_u32 v37, {16 * kt + r}, v{vT1}')
            A(f'v_cmp_gt_u32 vcc, v37, v{vT0}')
            A('s_nop 1')
            A(f'v_cndmask_b32 v{MSK + 4*kt + r}, 0, v36, vcc')
    for r in range(4): A(f'v_mov_b32 v{ONE + r}, 0x3f803f80')
    A(f'v_and_b32 v{vT0}, 7, v0'); A(f'v_lshrrev_b32 v{vT1}, 1, v{vT0}')
    A(f'v_and_b32 v{vT0}, 1, v{vT0}'); A(f'v_lshlrev_b32 v{vT0}, 4, v{vT0}')
    A(f'v_mov_b32 v36, 0x3f80'); A(f'v_lshlrev_b32 v{vT0}, v{vT0}, v36')
    for d in range(4):
        A(f'v_cmp_eq_u32 vcc, {d}, v{vT1}'); A('s_nop 1'); A(f'v_cndmask_b32 v{SEL + d}, 0, v{vT0}, vcc')
    A(f's_mov_b32 s{sC}, {hex(f32bits(SM_SCALE_LOG2E))}')
    A(f's_lshl_b32 s{sT}, s{sXCC}, 21'); A(f's_add_u32 s{sT}, s{sT}, {WS_FP}'); add64(A, sFPb, sWS, f's{sT}')
    A(f's_lshl_b32 s{sT}, s{sXCC}, 7'); A(f's_add_u32 s{sT}, s{sT}, {WS_FLR}'); add64(A, sFLR, sWS, f's{sT}')
    A(f's_lshl_b32 s{sT}, s{sB}, 5'); A(f's_add_u32 s{sT}, s{sT}, s{sH}'); A(f's_lshl_b32 s{sT}, s{sT}, 6')
    A(f's_add_u32 s{sT}, s{sT}, {WS_FLM}'); add64(A, sFLM, sWS, f's{sT}')
    A(f's_lshl_b32 s{sT}, s{sR}, 5'); A(f's_add_u32 s{sT}, s{sT}, s{sH}'); A(f's_lshl_b32 s{sT}, s{sT}, 6')
    A(f's_add_u32 s{sT}, s{sT}, {WS_FLA}'); add64(A, sFLA, sWS, f's{sT}')
    A(f's_cmp_eq_u32 s{sR}, 0'); A(f's_cselect_b32 s{sN}, 22, 21')
    A(f's_mov_b32 s{sI}, 0'); A(f's_mov_b32 s{sXL}, {LW_X0}')

    NF = 10
    def fst(i):
        if opt.get('fstamps'): A(f's_memtime s[{64 + 2*i}:{65 + 2*i}]')
    def fst_acc():
        if opt.get('fstamps'):
            A('s_waitcnt lgkmcnt(0)')
            for i in range(NF - 1):
                A(f's_sub_u32 s{sT}, s{64 + 2*(i+1)}, s{64 + 2*i}'); A(f's_add_u32 s{84 + i}, s{84 + i}, s{sT}')
    if opt.get('fstamps'):
        for i in range(NF): A(f's_mov_b32 s{84 + i}, 0')
    slow = []
    vF0, vF1 = 189, 190
    vFA = 191
    vKVr = 3
    A(f'v_and_b32 v{vFA}, 31, v0'); A(f'v_lshlrev_b32 v{vFA}, 2, v{vFA}')
    RL = 192; RES = 180; AV = 184; GV = 188
    sAB = 40; sOutP = 42; sKVn = 44; sKVL = 46; sRed = 64 if not opt.get('fstamps') else 94
    class Vm:
        def __init__(self): self.q = []; self.done = -1
        def op(self, tag, ins): A(ins); self.q.append(tag)
        def mk(self, tag, ins): return lambda: self.op(tag, ins)
        def need(self, *tags):
            last = max(len(self.q) - 1 - self.q[::-1].index(t) for t in tags)
            if last > self.done:
                n = len(self.q) - 1 - last; assert n <= 63
                A(f's_waitcnt vmcnt({n})'); self.done = last
        def drain(self): A('s_waitcnt vmcnt(0)'); self.done = len(self.q) - 1
    def kv_setup(seg_sgpr, ldsbase_sgpr):
        A(f's_lshl_b32 s{sT}, s{sB}, 6'); A(f's_add_u32 s{sT}, s{sT}, s{seg_sgpr}')
        A(f's_lshl_b32 s{sT}, s{sT}, 5'); A(f's_add_u32 s{sT}, s{sT}, s{sH}')
        A(f's_lshl_b32 s{sT}, s{sT}, 14'); A(f's_lshl_b32 s{sT+1}, s{sW}, 12'); A(f's_add_u32 s{sT}, s{sT}, s{sT+1}')
        add64(A, sKVn, sWS, f's{sT}')
        A(f's_add_u32 s{sKVL+1}, s{sT+1}, s{ldsbase_sgpr}')
    def check_flr(need_sgpr):
        ls = A.label('flrslow'); lb = A.label('flrok')
        A(f'v_cmp_gt_u32 vcc, s{need_sgpr}, v{vF1}')
        A(f's_cbranch_vccnz {ls}')
        A(f'{lb}:')
        slow.append(('flr', ls, lb, need_sgpr))
    def check_flm(need_sgpr):
        ls = A.label('flmslow'); lb = A.label('flmok')
        A(f'v_readfirstlane_b32 s{sT+5}, v{vF0}')
        A('s_nop 0')
        A(f's_cmp_lt_u32 s{sT+5}, s{need_sgpr}')
        A(f's_cbranch_scc1 {ls}')
        A(f'{lb}:')
        slow.append(('flm', ls, lb, need_sgpr))
    def a_store_ins(): return f'global_store_dwordx4 v{vAB}, {v(RES,4)}, s[{sAB}:{sAB+1}] sc1'
    def b_finish(skip0):
        lp = A.label('await'); lok = A.label('aok')
        A('s_mov_b32 exec_hi, 0')
        if skip0:
            A(f's_cmp_eq_u32 s{sI}, 0'); A(f's_cbranch_scc1 {lok}')
        A(f'{lp}:')
        A(f'v_cmp_eq_u32 vcc, -1, v{AV}')
        A(f's_cbranch_vccz {lok}')
        A(f'global_load_dwordx4 {v(AV,4)}, v{vAB}, s[{sAB}:{sAB+1}] sc1')
        A('s_waitcnt vmcnt(0)')
        timeout_check(A, 'L_fail')
        A(f's_branch {lp}')
        A(f'{lok}:')
        for r in range(4):
            A(f'v_sub_f32 v{AV + r}, v{AV + r}, v{RES + r}')
            A(f'v_fma_f32 v{AV + r}, v{GV}, v{AV + r}, v{RES + r}')
        A(f'v_cvt_pk_bf16_f32 v{AV}, v{AV}, v{AV+1}'); A(f'v_cvt_pk_bf16_f32 v{AV+1}, v{AV+2}, v{AV+3}')
        A(f'global_store_dwordx2 v{vOut}, {v(AV,2)}, s[{sOutP}:{sOutP+1}]')
        A('s_mov_b64 exec, -1')
    def prev_bases():
        A(f's_lshl_b32 s{sT}, s{sPrev}, 16'); A(f's_add_u32 s{sT}, s{sT}, {WS_AB}')
        A(f's_cmp_eq_u32 s{sI}, 0'); A(f's_cselect_b32 s{sT}, {WS_FDUM}, s{sT}')
        add64(A, sAB, sWS, f's{sT}')
        A(f's_lshl_b32 s{sT}, s{sPrev}, 15'); add64(A, sOutP, sOut, f's{sT}')
        l = A.label('od'); A(f's_cmp_lg_u32 s{sI}, 0'); A(f's_cbranch_scc1 {l}')
        add64(A, sOutP, sWS, WS_FDUM + 0x40000)
        A(f'{l}:')
    def g_base():
        A(f's_lshl_b32 s{sT}, s{sPrev}, 7'); A(f's_and_b32 s{sT+1}, s{sW}, 1'); A(f's_lshl_b32 s{sT+1}, s{sT+1}, 6')
        A(f's_add_u32 s{sT}, s{sT}, s{sT+1}'); A(f's_add_u32 s{sT}, s{sT}, {WS_G}'); add64(A, sA2, sWS, f's{sT}')
        A(f'v_and_b32 v{vT0}, 15, v0'); A(f'v_lshlrev_b32 v{vT0}, 2, v{vT0}')
    A(f's_mov_b32 s{sKVL}, {LW_KV0}')
    kv_setup(sSeg, sKVL)
    A(f's_mov_b32 m0, s{sKVL+1}'); A('s_nop 0')
    for i in range(4): A(f'global_load_lds_dwordx4 v{vL16}, s[{sKVn}:{sKVn+1}] offset:{1024 * i} sc1')
    A(f's_mov_b32 s{sPrev}, 0')

    def f_loop(side):
        V = Vm(); L = Lds(A)
        A('.p2align 6')
        A(f'L_f_loop{side}:')
        fst(0)
        A('s_waitcnt vmcnt(0)')
        A('s_barrier')
        fst(1)
        V.op('flr', f'global_load_dword v{vF1}, v{vFA}, s[{sFLR}:{sFLR+1}] sc1')
        A('s_mov_b64 exec, 1')
        V.op('flm', f'global_load_dword v{vF0}, v{vL16}, s[{sFLM}:{sFLM+1}] sc1')
        A('s_mov_b64 exec, -1')
        for k in range(4): A(f'v_add_u32 v{rx[k]}, s{sXL}, v{vXR[k]}')
        A(f'v_add_u32 v{vKVr}, s{sKVL}, v{vL16}')
        accQ = 32; xf = [64, 68, 72, 76]
        def xr(ks): return f'ds_read_b128 {v(xf[ks & 3], 4)}, v{rx[ks & 3]} offset:{(ks >> 2) * 1024}'
        for ks in range(3): A(xr(ks))
        A(f's_lshl_b32 s{sT}, s{sB}, 6'); A(f's_add_u32 s{sT}, s{sT}, s{sSeg}')
        A(f's_lshl_b32 s{sT}, s{sT}, 5'); A(f's_add_u32 s{sT}, s{sT}, s{sH}')
        A(f's_lshl_b32 s{sT+1}, s{sT}, 13'); A(f's_add_u32 s{sT+1}, s{sT+1}, {WS_KM}'); add64(A, sKM, sWS, f's{sT+1}')
        A(f's_add_u32 s{sT+2}, s{sSeg}, 3'); A(f's_min_u32 s{sT+2}, s{sT+2}, 63')
        A(f's_lshl_b32 s{sT}, s{sT+2}, 15'); add64(A, sA, sX, f's{sT}')
        A(f's_xor_b32 s{sT+3}, s{sXL}, {LW_X0 ^ LW_X1}')
        A(f's_lshl_b32 s{sT}, s{sW}, 13'); A(f's_add_u32 s{sT+3}, s{sT+3}, s{sT}')
        A(f's_xor_b32 s{sKVL}, s{sKVL}, {LW_KV0 ^ LW_KV1}')
        kv_setup(sT + 2, sKVL)
        A(f's_sub_u32 s{sT}, s{sI}, 1'); A(f's_and_b32 s{sT}, s{sT}, 1'); A(f's_lshl_b32 s{sT}, s{sT}, 20')
        add64(A, sRed, sFPb, f's{sT}')
        prev_bases()
        fill = {}
        def put(s_, *x): fill.setdefault(s_, []).extend(x)
        for kc in range(8):
            put(1 + kc, (lambda kc=kc: (A(f's_add_u32 m0, s{sT+3}, {kc * 1024 - kc * 128}'), A('s_nop 0'),
                                        V.op(('x', kc), f'global_load_lds_dwordx4 v{vXG}, s[{sA}:{sA+1}] offset:{kc * 128}'))))
        put(9, lambda: (A(f's_mov_b32 m0, s{sKVL+1}'), A('s_nop 0')))
        for i in range(4): put(9 + i, V.mk(('kv', i), f'global_load_lds_dwordx4 v{vL16}, s[{sKVn}:{sKVn+1}] offset:{1024 * i} sc1'))
        put(13, lambda: (V.need('flr'), check_flr(sI)))
        for i8 in range(8):
            put(14 + 2 * i8, V.mk(('red', i8), f'global_load_dwordx4 {v(RL + 4*i8, 4)}, v{vFPr}, s[{sRed}:{sRed+1}] sc1'))
            if i8 < 7: put(14 + 2 * i8, f's_add_u32 s{sRed}, s{sRed}, 4096', f's_addc_u32 s{sRed+1}, s{sRed+1}, 0')
        for ks in range(32):
            A(f's_waitcnt lgkmcnt({min(2, 31 - ks)})')
            c = '0' if ks == 0 else v(accQ, 16)
            A(f'v_mfma_f32_32x32x16_bf16 {v(accQ,16)}, {a_(4*ks,4)}, {v(xf[ks & 3],4)}, {c}')
            if ks + 3 < 32: A(xr(ks + 3))
            for x in fill.get(ks, []):
                if callable(x): x()
                else: A(x)
        fst(2)
        A(f's_add_u32 s{sT+4}, s{sSeg}, 1')
        V.need('flm')
        if not opt.get('nowaitm'): check_flm(sT + 4)
        A(f's_lshl_b32 s{sT}, s{sW}, 10'); add64(A, sA, sKM, f's{sT}')
        V.op('kmk', f'global_load_dwordx2 v[128:129], v{vL16}, s[{sA}:{sA+1}] sc1')
        A(f's_lshr_b32 s{sT}, s{sW}, 1'); A(f's_lshl_b32 s{sT}, s{sT}, 11'); add64(A, sA, sKM, f's{sT}')
        V.op('kmv0', f'global_load_dwordx2 v[130:131], v{vL16}, s[{sA}:{sA+1}] offset:8 sc1')
        V.op('kmv1', f'global_load_dwordx2 v[132:133], v{vL16}, s[{sA}:{sA+1}] offset:1032 sc1')
        for i in range(8): A(f'v_cvt_pk_bf16_f32 v{48 + i}, v{accQ + 2*i}, v{accQ + 2*i + 1}')
        A(f'ds_write_b128 v{vQw}, v[48:51]')
        A(f'ds_write_b128 v{vQw}, v[52:55] offset:512')
        fst(3)
        for i8 in range(8):
            V.need(('red', i8))
            c = '0' if i8 == 0 else v(RES, 4)
            A(f'v_mfma_f32_16x16x32_bf16 {v(RES,4)}, {v(SEL,4)}, {v(RL + 4*i8,4)}, {c}')
        KX = 80; VX = 112
        for i in range(8): A(f'ds_read_b128 {v(KX + 4*i,4)}, v{vKVr} offset:{1024 * i}')
        A(f's_lshr_b32 s{sT}, s{sW}, 1'); A(f's_lshl_b32 s{sT}, s{sT}, 12'); A(f's_add_u32 s{sT}, s{sT}, 8192')
        A(f'v_add_u32 v{vT0}, s{sT}, v{vKVr}')
        for f in range(4): A(f'ds_read_b128 {v(VX + 4*f,4)}, v{vT0} offset:{1024 * f}')
        if side == 'A':
            A(f'v_min_u32 v{RES}, -2, v{RES}')
            A('s_mov_b32 exec_hi, 0')
            V.op('ast', a_store_ins())
            A('s_mov_b64 exec, -1')
        fst(4)
        V.need('kmk')
        A(f'ds_write_b32 v{vKw}, v128')
        A(f'ds_write_b32 v{vKw}, v129 offset:512')
        A('s_waitcnt lgkmcnt(0)')
        A('s_barrier')
        qf = [64, 68, 72, 76]; kf = [136, 140, 144, 148]
        for ks in range(4): A(f'ds_read_b128 {v(qf[ks],4)}, v{vQr} offset:{ks * 2048}')
        for ks in range(4):
            for jj in range(2):
                A(f'ds_read_b64_tr_b16 {v(kf[ks] + 2*jj, 2)}, v{vKr} offset:{ks * 1024 + jj * 256}')
        V.need('kmv1')
        A('s_waitcnt lgkmcnt(8)')
        fst(5)
        S = [32, 36]; Sm = 40
        for ks in range(4):
            for kt in range(2):
                c = v(MSK + 4*kt, 4) if ks == 0 else v(S[kt], 4)
                A(f'v_mfma_f32_16x16x32_bf16 {v(S[kt],4)}, {v(KX + 4*(4*kt + ks),4)}, {v(qf[ks],4)}, {c}')
        A('s_waitcnt lgkmcnt(0)')
        for ks in range(4):
            c = '0' if ks == 0 else v(Sm, 4)
            A(f'v_mfma_f32_16x16x32_bf16 {v(Sm,4)}, {v(kf[ks],4)}, {v(qf[ks],4)}, {c}')
        if side == 'B':
            g_base()
            A('s_mov_b32 exec_hi, 0')
            V.op('ald', f'global_load_dwordx4 {v(AV,4)}, v{vAB}, s[{sAB}:{sAB+1}] sc1')
            V.op('gld', f'global_load_dword v{GV}, v{vT0}, s[{sA2}:{sA2+1}] sc1')
            A('s_mov_b64 exec, -1')
        A('s_nop 7')
        sx = [S[0] + r for r in range(4)] + [S[1] + r for r in range(4)]
        A(f'v_max3_f32 v{vT0}, v{sx[0]}, v{sx[1]}, v{sx[2]}')
        A(f'v_max3_f32 v{vT1}, v{sx[3]}, v{sx[4]}, v{sx[5]}')
        A(f'v_max3_f32 v{vT0}, v{vT0}, v{sx[6]}, v{sx[7]}')
        A(f'v_max3_f32 v{vT0}, v{vT0}, v{Sm}, v{Sm+1}')
        A(f'v_max_f32 v{vT0}, v{vT0}, v{vT1}')
        A(f'v_mov_b32 v{vT1}, v{vT0}'); A('s_nop 1')
        A(f'v_permlane16_swap_b32 v{vT0}, v{vT1}')
        A(f'v_max_f32 v{vT0}, v{vT0}, v{vT1}')
        A(f'v_mov_b32 v{vT1}, v{vT0}'); A('s_nop 1')
        A(f'v_permlane32_swap_b32 v{vT0}, v{vT1}')
        A(f'v_max_f32 v{vT0}, v{vT0}, v{vT1}')
        A(f'v_mul_f32 v{vT0}, s{sC}, v{vT0}')
        for r in sx + [Sm, Sm + 1]: A(f'v_fma_f32 v{r}, v{r}, s{sC}, -v{vT0}')
        for r in sx + [Sm, Sm + 1]: A(f'v_exp_f32 v{r}, v{r}')
        Px = 44
        A('v_mov_b32 v49, 0'); A('v_mov_b32 v50, 0')
        for i in range(4): A(f'v_cvt_pk_bf16_f32 v{Px + i}, v{sx[2*i]}, v{sx[2*i+1]}')
        A(f'v_cvt_pk_bf16_f32 v48, v{Sm}, v{Sm+1}'); A(f'v_cvt_pk_bf16_f32 v51, v{Sm}, v{Sm+1}')
        O = [152 + 4*f for f in range(4)]; lacc = 168
        A('s_nop 1')
        A(f'v_mfma_f32_16x16x32_bf16 {v(lacc,4)}, {v(ONE,4)}, {v(Px,4)}, 0')
        for f in range(4): A(f'v_mfma_f32_16x16x32_bf16 {v(O[f],4)}, {v(VX + 4*f,4)}, {v(Px,4)}, 0')
        A(f'v_mfma_f32_16x16x16_bf16 {v(lacc,4)}, {v(ONE,2)}, v[48:49], {v(lacc,4)}')
        for f in range(4):
            bop = 'v[48:49]' if f % 2 == 0 else 'v[50:51]'
            A(f'v_mfma_f32_16x16x16_bf16 {v(O[f],4)}, {v(130 + 2*(f >> 1),2)}, {bop}, {v(O[f],4)}')
        A('s_nop 7'); A('s_nop 1')
        A(f'v_rcp_f32 v{vT0}, v{lacc}'); A('s_nop 0')
        for r in range(16): A(f'v_mul_f32 v{152 + r}, v{152 + r}, v{vT0}')
        for r in range(8): A(f'v_cvt_pk_bf16_f32 v{152 + r}, v{152 + 2*r}, v{153 + 2*r}')
        A(f'ds_write_b128 v{vOw}, v[152:155]')
        A(f'ds_write_b128 v{vOw}, v[156:159] offset:2048')
        A(f's_and_b32 s{sT}, s{sI}, 1'); A(f's_lshl_b32 s{sT}, s{sT}, 20'); add64(A, sA, sFPb, f's{sT}')
        A('s_waitcnt lgkmcnt(0)')
        A('s_barrier')
        fst(6)
        of = [64 + 4*k for k in range(8)]
        for kk in range(8): A(f'ds_read_b128 {v(of[kk],4)}, v23 offset:{LW_O - 65536 + kk * 1024}')
        acc = [192 + 16*ct for ct in range(4)]
        def epi(ct):
            o = 32 + 8 * (ct & 1)
            r = [f'v_cvt_pk_bf16_f32 v{o + i}, v{acc[ct] + 2*i}, v{acc[ct] + 2*i + 1}' for i in range(8)]
            st = []
            for qq in range(2):
                st.append([lambda qq=qq, o=o, ct=ct: V.op(('fp', ct, qq), f'global_store_dwordx4 v{vFPs}, {v(o + 4*qq, 4)}, s[{sA}:{sA+1}]'),
                           f's_add_u32 s{sA}, s{sA}, 32768', f's_addc_u32 s{sA+1}, s{sA+1}, 0'])
            return r[:4] + st[0] + r[4:] + st[1]
        todo = []
        for ct in range(4):
            for kk in range(8):
                if ct == 0: A(f's_waitcnt lgkmcnt({7 - kk})')
                c = '0' if kk == 0 else v(acc[ct], 16)
                A(f'v_mfma_f32_32x32x16_bf16 {v(acc[ct],16)}, {a_(128 + (ct*8 + kk)*4,4)}, {v(of[kk],4)}, {c}')
                if ct > 0 and kk == 2: todo += epi(ct - 1)
                for _ in range(3):
                    if todo:
                        x = todo.pop(0)
                        if callable(x): x()
                        else: A(x)
        for x in todo:
            if callable(x): x()
            else: A(x)
        fst(7)
        A('s_nop 15'); A('s_nop 3')
        for x in epi(3):
            if callable(x): x()
            else: A(x)
        fst(8)
        if side == 'B':
            V.need('gld')
            b_finish(True)
        A('s_waitcnt vmcnt(0)')
        A('s_barrier')
        fst(9)
        fst_acc()
        l = A.label('noflr')
        A(f's_cmp_lg_u32 s{sW}, 0'); A(f's_cbranch_scc1 {l}')
        A(f's_add_u32 s{sT}, s{sI}, 1')
        A(f'v_mov_b32 v{vT0}, s{sT}'); A(f's_lshl_b32 s{sT}, s{sH}, 2'); A(f'v_mov_b32 v{vT1}, s{sT}')
        A('s_mov_b64 exec, 1')
        A(f'global_store_dword v{vT1}, v{vT0}, s[{sFLR}:{sFLR+1}]')
        A('s_mov_b64 exec, -1')
        A(f'{l}:')
        to2 = dict(opt); to2['tracev'] = ('v8', 'v9')
        trace(A, to2, 8, dyn=sI)
        A(f's_mov_b32 s{sPrev}, s{sSeg}')
        A(f's_add_u32 s{sSeg}, s{sSeg}, 3')
        A(f's_xor_b32 s{sXL}, s{sXL}, {LW_X0 ^ LW_X1}')
        A(f's_add_u32 s{sI}, s{sI}, 1')
        A(f's_cmp_lt_u32 s{sI}, s{sN}')
        A(f's_cbranch_scc1 L_f_loop{side}')
        lp = A.label('lastflr')
        A(f'{lp}:')
        A(f'global_load_dword v{vF1}, v{vFA}, s[{sFLR}:{sFLR+1}] sc1')
        A('s_waitcnt vmcnt(0)')
        A(f'v_cmp_gt_u32 vcc, s{sI}, v{vF1}')
        timeout_check(A, 'L_fail')
        A(f's_cbranch_vccnz {lp}')
        A(f's_sub_u32 s{sT}, s{sI}, 1'); A(f's_and_b32 s{sT}, s{sT}, 1'); A(f's_lshl_b32 s{sT}, s{sT}, 20')
        add64(A, sRed, sFPb, f's{sT}')
        for i8 in range(8):
            A(f'global_load_dwordx4 {v(RL + 4*i8, 4)}, v{vFPr}, s[{sRed}:{sRed+1}] sc1')
            if i8 < 7: add64(A, sRed, sRed, 4096)
        prev_bases()
        if side == 'B':
            g_base()
            A('s_mov_b32 exec_hi, 0')
            A(f'global_load_dwordx4 {v(AV,4)}, v{vAB}, s[{sAB}:{sAB+1}] sc1')
            A(f'global_load_dword v{GV}, v{vT0}, s[{sA2}:{sA2+1}] sc1')
            A('s_mov_b64 exec, -1')
        y = 2 if side == 'B' else 0
        for i8 in range(8):
            A(f's_waitcnt vmcnt({y + 7 - i8})')
            c = '0' if i8 == 0 else v(RES, 4)
            A(f'v_mfma_f32_16x16x32_bf16 {v(RES,4)}, {v(SEL,4)}, {v(RL + 4*i8,4)}, {c}')
        A('s_nop 7'); A('s_nop 1')
        if side == 'A':
            A(f'v_min_u32 v{RES}, -2, v{RES}')
            A('s_mov_b32 exec_hi, 0')
            A(a_store_ins())
            A('s_mov_b64 exec, -1')
        else:
            A('s_waitcnt vmcnt(0)')
            b_finish(False)
        A('s_waitcnt vmcnt(0)')
        to2 = dict(opt); to2['tracev'] = ('v8', 'v9')
        trace(A, to2, 4)
        if opt.get('fstamps'):
            A(f's_lshl_b32 s{sT}, s{sXCC}, 5'); A(f's_add_u32 s{sT}, s{sT}, s{sH}'); A(f's_lshl_b32 s{sT}, s{sT}, 2'); A(f's_add_u32 s{sT}, s{sT}, s{sW}')
            A(f's_lshl_b32 s{sT}, s{sT}, 6'); A(f's_add_u32 s{sT}, s{sT}, 0x06900000')
            A(f'v_mov_b32 v8, s{sT}'); A('s_mov_b64 exec, 1')
            for i in range(NF):
                A(f'v_mov_b32 v9, s{84 + i}'); A(f'global_store_dword v8, v9, s[{sWS}:{sWS+1}] offset:{4*i}')
            A('s_waitcnt vmcnt(0)')
        A('s_endpgm')
    A(f's_cmp_eq_u32 s{sB}, 1'); A('s_cbranch_scc1 L_f_sideB')
    f_loop('A')
    A('L_f_sideB:')
    f_loop('B')
    for kind, ls, lb, need in slow:
        A(f'{ls}:')
        if kind == 'flr':
            A(f'global_load_dword v{vF1}, v{vFA}, s[{sFLR}:{sFLR+1}] sc1')
            A('s_waitcnt vmcnt(0)')
            A(f'v_cmp_gt_u32 vcc, s{need}, v{vF1}')
            timeout_check(A, 'L_fail')
            A(f's_cbranch_vccnz {ls}')
        else:
            A('s_mov_b64 exec, 1')
            A(f'global_load_dword v{vF0}, v{vL16}, s[{sFLM}:{sFLM+1}] sc1')
            A('s_mov_b64 exec, -1')
            A('s_waitcnt vmcnt(0)')
            A(f'v_readfirstlane_b32 s{sT+5}, v{vF0}')
            timeout_check(A, 'L_fail')
            A(f's_cmp_lt_u32 s{sT+5}, s{need}')
            A(f's_cbranch_scc1 {ls}')
        A(f's_branch {lb}')
```

```python
from asmlib import *
import struct

WS_KV   = 0x00000000
WS_KM   = 0x04000000
WS_PR   = 0x06000000
WS_MR   = 0x06F00000
WS_FLK  = 0x07000000
WS_FLM  = 0x07001000
WS_DUMMY= 0x06F80000
WS_DBGM = 0x06200000

L_MEM  = 0
L_Q    = 8192
L_K    = 10240
L_ZERO = 14336
L_WOA  = 16384
L_WOB  = 57344
L_VL   = 98304
L_KV1  = 131072
L_KV0  = 147456
L_STG  = 16384
TL = [0, 1, 2, 6, 7]

vVL  = 0
vIDX = 1
vM = [2, 3, 4, 5]
vQw, vKw, vQr, vKr = 6, 7, 8, 9
vKX, vVX = 10, 11
vOw, vL16 = 12, 13
vWoA, vWoB = 14, 15
vPst, vRed, vMst = 16, 17, 18
vFlag = 19
ONE = 20
vPub = 24
vT0, vT1 = 26, 27
mA = [32 + 4 * c for c in range(8)]
accQ, accK, accV = 64, 72, 80
qf = [64, 68, 88, 92]
kf = [72, 76, 96, 100]
Sx = [104, 108]
Sm = 28
WRES = 112
WV = 128
def wv_home(ft, c): return WV + (ft * 8 + c) * 8
WO_HOME = {(3, 0): WRES, (3, 1): WRES + 8, (4, 0): wv_home(0, 2), (4, 1): wv_home(0, 3), (5, 0): wv_home(1, 2), (5, 1): wv_home(1, 3)}
VSTREAM = [(0, 2), (1, 2), (0, 3), (1, 3)]
VSBUF = [88, 96, 104, 32]
sWS = 4; sDBG = 6
sW, sH, sB = 8, 9, 10
sStep = 11
sTO = 12
sA = 14; sA2 = 16
sP0 = [18, 22, 26]
sP1 = [20, 24, 28]
sPr = [30, 32, 34]
sM = [36, 38, 40]
sKV = 42
sKMk = 44
sKMv = 46
sC = 48
sEX = 50
sKVL = 53
sTag = 52
sT = 54
sFLK = 60
sFLM = 62
sFE = 64
sNeed = 66

SM_SCALE_LOG2E = (128 ** -0.5) * 1.4426950408889634
def f32bits(x): return struct.unpack('<I', struct.pack('<f', x))[0]

def add64(A, dst, src, off):
    A(f's_add_u32 s{dst}, s{src}, {off}')
    A(f's_addc_u32 s{dst+1}, s{src+1}, 0')

def chain_startup_weights(A, w, K, nt='nt', opt={}):
    vG = [40, 41, 42, 43]; vR = [44, 45]; vX = 46; vY = 47; vZ = 48
    tmpV = (w * 8192) if w < 2 else (L_KV0 + (w - 2) * 8192)
    def dma_qkv_chunk(mat, c):
        add64(A, sA, K[mat], c * 64 * 8192)
        for ii in range(4):
            A(f's_mov_b32 m0, {L_STG + c * 16384 + w * 4096 + ii * 1024}')
            A('s_nop 0')
            A(f'global_load_lds_dwordx4 v{vG[ii]}, s[{sA}:{sA+1}] {nt}')
    def dma_wo_chunk(c):
        for ii in range(4):
            e = 16 * c + 4 * w + ii
            x = (((e >> 5) & 1) << 2) | (((e >> 4) & 1) << 1) | (e & 1)
            add64(A, sA, K['Wo'], e * 1024)
            A(f'v_xor_b32 v{vZ}, {32 * x}, v{vL16}')
            A(f's_mov_b32 m0, {L_STG + c * 16384 + (4 * w + ii) * 1024}')
            A('s_nop 0')
            A(f'global_load_lds_dwordx4 v{vZ}, s[{sA}:{sA+1}] {nt}')
    A(f'v_lshrrev_b32 v{vX}, 4, v0')
    A(f'v_and_b32 v{vY}, 1, v{vX}')
    A(f'v_or_b32 v{vY}, {((w >> 1) << 2) | ((w & 1) << 1)}, v{vY}')
    A(f'v_lshlrev_b32 v{vY}, 1, v{vY}')
    A(f'v_and_b32 v{vZ}, 15, v0')
    A(f'v_xor_b32 v{vZ}, v{vZ}, v{vY}')
    A(f'v_lshlrev_b32 v{vZ}, 4, v{vZ}')
    A(f'v_add_u32 v{vX}, {16 * w}, v{vX}')
    A(f'v_lshlrev_b32 v{vX}, 13, v{vX}')
    A(f'v_add_u32 v{vG[0]}, v{vX}, v{vZ}')
    for ii in range(1, 4):
        A(f'v_add_u32 v{vG[ii]}, {ii * 32768}, v{vG[0]}')
    A(f'v_bfe_u32 v{vX}, v0, 3, 1')
    A(f'v_bfe_u32 v{vY}, v0, 4, 1')
    A(f'v_bfe_u32 v{vZ}, v0, 2, 1')
    A(f'v_lshlrev_b32 v49, 2, v{vX}')
    A(f'v_lshl_or_b32 v49, v{vY}, 1, v49')
    A(f'v_or_b32 v49, v49, v{vZ}')
    A(f'v_lshlrev_b32 v50, 5, v{vX}')
    A(f'v_lshl_or_b32 v50, v{vY}, 4, v50')
    A(f'v_or_b32 v50, v50, v{vZ}')
    A(f'v_bfe_u32 v51, v0, 5, 1')
    A(f'v_lshl_or_b32 v50, v51, 2, v50')
    A(f'v_and_b32 v51, 3, v0')
    A(f'v_lshlrev_b32 v51, 3, v51')
    A(f'v_xor_b32 v52, {2 * w}, v49')
    A(f'v_lshlrev_b32 v52, 5, v52')
    A(f'v_lshl_or_b32 v52, v50, 8, v52')
    A(f'v_add_u32 v52, v52, v51')
    A(f'v_lshlrev_b32 v53, 5, v49')
    A(f'v_lshl_or_b32 v53, v50, 10, v53')
    A(f'v_add_u32 v53, v53, v51')
    A(f'v_add_u32 v53, {L_STG + 256 * w}, v53')
    A(f'v_add_u32 v55, {tmpV}, v{vL16}')
    for c in range(8):
        dma_qkv_chunk('Wq', c)
    nxt = {'Wq': 'Wk', 'Wk': 'Wv', 'Wv': 'Wo'}
    for mat in ['Wq', 'Wk', 'Wv']:
        for c in range(8):
            A('s_waitcnt vmcnt(28)')
            A('s_barrier')
            if mat == 'Wq' and c == 0 and w == 0:
                A(f's_lshl_b32 s{sT}, s{sB}, 2'); A(f's_add_u32 s{sT}, s{sT}, 32')
                A(f'v_mov_b32 v30, s{sT}'); A('v_mov_b32 v31, 1')
                A('s_mov_b64 exec, 1')
                A(f'global_atomic_add v30, v31, s[{sDBG}:{sDBG+1}] sc1')
                A('s_mov_b64 exec, -1')
            cc = (c - 2 * w) & 7
            A(f'v_add_u32 v{vR[0]}, {L_STG + c * 16384}, v52')
            A(f'v_xor_b32 v{vR[1]}, 32, v{vR[0]}')
            streamed = (mat == 'Wv' and cc in (2, 3))
            for ft in range(2):
                for z in range(4):
                    off = 2048 * (z >> 1) + 512 * (z & 1)
                    r = (ft * 8 + cc) * 8 + 2 * z
                    if mat == 'Wq': dst = a_(r, 2)
                    elif mat == 'Wk': dst = a_(128 + r, 2)
                    elif streamed: dst = v(56 + 8 * ft + 2 * z, 2)
                    else: dst = v(WV + r, 2)
                    A(f'ds_read_b64_tr_b16 {dst}, v{vR[ft]} offset:{off}')
            A('s_waitcnt lgkmcnt(0)')
            if streamed:
                for ft in range(2):
                    i = VSTREAM.index((ft, cc))
                    A(f'ds_write_b128 v55, {v(56 + 8*ft, 4)} offset:{i * 2048}')
                    A(f'ds_write_b128 v55, {v(60 + 8*ft, 4)} offset:{i * 2048 + 1024}')
                A('s_waitcnt lgkmcnt(0)')
            A('s_barrier')
            if nxt[mat] == 'Wo': dma_wo_chunk(c)
            else: dma_qkv_chunk(nxt[mat], c)
        to = dict(opt); to['tracev'] = ('v30', 'v31')
        trace(A, to, {'Wq': 5, 'Wk': 6, 'Wv': 7}[mat])
    def wo_read(t, ks2, dst):
        A(f'v_xor_b32 v54, {32 * t}, v53')
        if ks2: A(f'v_add_u32 v54, 65536, v54')
        for z in range(4):
            A(f'ds_read_b64_tr_b16 {v(dst + 2 * z, 2)}, v54 offset:{8192 * (z >> 1) + 2048 * (z & 1)}')
    A('s_waitcnt vmcnt(0)')
    A('s_barrier')
    for ks2, base in [(0, vWoA), (1, vWoB)]:
        for t in (3, 4, 5): wo_read(t, ks2, WO_HOME[(t, ks2)])
        for i, t in enumerate(TL): wo_read(t, ks2, 56 + 8 * i)
        A('s_waitcnt lgkmcnt(0)')
        A('s_barrier')
        for i, t in enumerate(TL):
            A(f'ds_write_b128 v{base}, {v(56 + 8*i, 4)} offset:{i * 2048}')
            A(f'ds_write_b128 v{base}, {v(60 + 8*i, 4)} offset:{i * 2048 + 1024}')
        A('s_waitcnt lgkmcnt(0)')
    for i in range(8):
        A(f'ds_read_b128 {v(56 + 4*i, 4)}, v55 offset:{i * 1024}')
    A(f'v_add_u32 v54, {L_VL + w * 8192}, v{vL16}')
    A('s_waitcnt lgkmcnt(0)')
    for i in range(8):
        A(f'ds_write_b128 v54, {v(56 + 4*i, 4)} offset:{i * 1024}')
    A('s_waitcnt lgkmcnt(0)')

def chain_setup_persistent(A):
    A(f'v_lshlrev_b32 v{vL16}, 4, v0')
    A(f'v_bfe_u32 v{vT0}, v0, 1, 1')
    A(f'v_mul_u32_u24 v{vT0}, 0xAAAA, v{vT0}')
    A(f'v_add_u32 v{vIDX}, 0x4444, v{vT0}')
    for i in range(4):
        A(f's_add_u32 s{sT}, s{sW}, {i}')
        A(f's_and_b32 s{sT}, s{sT}, 3')
        A(f's_lshl_b32 s{sT}, s{sT}, 11')
        A(f'v_add_u32 v{vM[i]}, s{sT}, v{vL16}')
    A(f'v_and_b32 v{vT0}, 15, v0')
    A(f'v_lshrrev_b32 v{vT1}, 4, v0')
    A(f's_lshl_b32 s{sT}, s{sW}, 5')
    A(f'v_add_u32 v30, s{sT}, v{vT0}')
    A(f'v_lshlrev_b32 v31, 4, v30')
    A(f'v_lshl_add_u32 v31, v{vT1}, 2, v31')
    A(f'v_add_u32 v{vQw}, {L_Q}, v31')
    A(f'v_lshlrev_b32 v31, 5, v30')
    A(f'v_lshl_add_u32 v31, v{vT1}, 3, v31')
    A(f'v_add_u32 v{vKw}, {L_K}, v31')
    A(f'v_bfe_u32 v30, v0, 5, 1')
    A(f'v_lshlrev_b32 v30, 4, v30')
    A(f'v_bfe_u32 v31, v0, 4, 1')
    A(f'v_lshl_add_u32 v30, v31, 2, v30')
    A(f'v_bfe_u32 v31, v0, 2, 2')
    A(f'v_add_u32 v30, v30, v31')
    A(f'v_and_b32 v31, 1, v0')
    A(f'v_lshlrev_b32 v31, 3, v31')
    A(f'v_lshl_add_u32 v31, v30, 4, v31')
    A(f'v_add_u32 v{vQr}, {L_Q}, v31')
    A(f'v_and_b32 v31, 3, v0')
    A(f'v_lshlrev_b32 v31, 3, v31')
    A(f'v_lshl_add_u32 v31, v30, 5, v31')
    A(f'v_add_u32 v{vKr}, {L_K}, v31')
    A(f'v_add_u32 v{vKX}, {L_KV0}, v{vL16}')
    A(f's_lshl_b32 s{sT}, s{sW}, 11')
    A(f's_add_u32 s{sT}, s{sT}, {L_KV0 + 8192}')
    A(f'v_add_u32 v{vVX}, s{sT}, v{vL16}')
    A(f'v_lshlrev_b32 v30, 4, v{vT1}')
    A(f'v_bfe_u32 v31, v{vT0}, 1, 2')
    A(f'v_lshl_add_u32 v30, v31, 2, v30')
    A(f'v_and_b32 v31, 1, v{vT0}')
    A(f'v_add_u32 v30, v30, v31')
    A(f's_and_b32 s{sT}, s{sW}, 1')
    A(f's_lshl_b32 s{sT}, s{sT}, 1')
    A(f'v_add_u32 v30, s{sT}, v30')
    A(f'v_lshlrev_b32 v30, 4, v30')
    A(f'v_lshrrev_b32 v31, 3, v{vT0}')
    A(f'v_lshl_add_u32 v30, v31, 3, v30')
    A(f's_lshr_b32 s{sT}, s{sW}, 1')
    A(f's_lshl_b32 s{sT}, s{sT}, 10')
    A(f'v_add_u32 v{vOw}, s{sT}, v30')
    A(f's_mul_i32 s{sT}, s{sW}, {5 * 2048}')
    A(f's_add_u32 s{sT+1}, s{sT}, {L_WOA}')
    A(f'v_add_u32 v{vWoA}, s{sT+1}, v{vL16}')
    A(f's_add_u32 s{sT+1}, s{sT}, {L_WOB}')
    A(f'v_add_u32 v{vWoB}, s{sT+1}, v{vL16}')
    A(f'v_lshrrev_b32 v30, 2, v{vT0}')
    A(f's_lshl_b32 s{sT}, s{sW}, 3')
    A(f'v_add_u32 v30, s{sT}, v30')
    A(f'v_lshlrev_b32 v30, 13, v30')
    A(f'v_and_b32 v31, 3, v{vT0}')
    A(f'v_lshl_add_u32 v31, v{vT1}, 2, v31')
    A(f'v_lshl_add_u32 v30, v31, 4, v30')
    A(f's_lshl_b32 s{sT}, s{sH}, 8')
    A(f'v_add_u32 v{vPst}, s{sT}, v30')
    A(f'v_and_b32 v30, 1, v{vT0}')
    A(f'v_lshl_add_u32 v30, v{vT1}, 1, v30')
    A(f'v_lshlrev_b32 v30, 8, v30')
    A(f'v_lshrrev_b32 v31, 1, v{vT0}')
    A(f'v_lshl_add_u32 v30, v31, 4, v30')
    A(f's_lshl_b32 s{sT}, s{sH}, 13')
    A(f's_and_b32 s{sT+1}, s{sW}, 1')
    A(f's_lshl_b32 s{sT+1}, s{sT+1}, 7')
    A(f's_add_u32 s{sT}, s{sT}, s{sT+1}')
    A(f'v_add_u32 v{vRed}, s{sT}, v30')
    A(f'v_and_b32 v30, 1, v{vT0}')
    A(f'v_bfe_u32 v31, v{vT0}, 2, 1')
    A(f'v_lshl_add_u32 v30, v31, 1, v30')
    A(f'v_lshrrev_b32 v31, 1, v{vT1}')
    A(f'v_lshl_add_u32 v30, v31, 2, v30')
    A(f'v_lshlrev_b32 v30, 4, v30')
    A(f'v_bfe_u32 v31, v{vT0}, 1, 1')
    A(f'v_lshl_add_u32 v30, v31, 3, v30')
    A(f'v_and_b32 v31, 1, v{vT1}')
    A(f'v_lshl_add_u32 v30, v31, 2, v30')
    A(f's_lshl_b32 s{sT}, s{sH}, 8')
    A(f's_and_b32 s{sT+1}, s{sW}, 1')
    A(f's_lshl_b32 s{sT+1}, s{sT+1}, 7')
    A(f's_add_u32 s{sT}, s{sT}, s{sT+1}')
    A(f'v_add_u32 v{vMst}, s{sT}, v30')
    for r in range(4): A(f'v_mov_b32 v{ONE + r}, 0x3f803f80')
    A(f's_mov_b32 s{sC}, {hex(f32bits(SM_SCALE_LOG2E))}')
    A(f's_mov_b32 s{sEX}, 0x00ff00ff')
    A(f's_mov_b32 s{sEX+1}, 0x00ff00ff')

def smf(A, acc, a, b):
    A(f'v_smfmac_f32_16x16x64_bf16 {v(acc,4)}, {v(a,4)}, {b}, v{vIDX}')
def Qm(A, ft, c): smf(A, accQ + 4 * ft, mA[c], a_((ft * 8 + c) * 8, 8))
def Km(A, ft, c): smf(A, accK + 4 * ft, mA[c], a_(128 + (ft * 8 + c) * 8, 8))
def Vm(A, ft, c):
    b = VSBUF[VSTREAM.index((ft, c))] if (ft, c) in VSTREAM else wv_home(ft, c)
    smf(A, accV + 4 * ft, mA[c], v(b, 8))

def initial_bases(A):
    A(f's_lshl_b32 s{sT+1}, s{sB}, 20')
    A(f's_add_u32 s{sT+1}, s{sT+1}, {WS_PR}')
    add64(A, sP0[0], sWS, f's{sT+1}')
    for k in range(3):
        if k: add64(A, sP0[k], sP0[0], k * 262144)
        add64(A, sP1[k], sP0[k], 32768)
        add64(A, sPr[k], sP0[k], 4096)
    A(f's_lshl_b32 s{sT+1}, s{sB}, 15')
    A(f's_add_u32 s{sT+1}, s{sT+1}, {WS_MR}')
    add64(A, sM[0], sWS, f's{sT+1}')
    add64(A, sM[1], sM[0], 8192)
    add64(A, sM[2], sM[0], 16384)
    A(f's_lshl_b32 s{sT}, s{sB}, 11')
    A(f's_add_u32 s{sT}, s{sT}, s{sH}')
    A(f's_lshl_b32 s{sT+1}, s{sT}, 14')
    A(f's_lshl_b32 s{sT+2}, s{sW}, 12')
    A(f's_add_u32 s{sT+1}, s{sT+1}, s{sT+2}')
    add64(A, sKV, sWS, f's{sT+1}')
    A(f's_lshl_b32 s{sT}, s{sT}, 13')
    A(f's_add_u32 s{sT}, s{sT}, {WS_KM}')
    A(f's_lshl_b32 s{sT+1}, s{sW}, 10')
    A(f's_add_u32 s{sT}, s{sT}, s{sT+1}')
    add64(A, sKMk, sWS, f's{sT}')

def timeout_check(A, lfail):
    A(f's_sub_u32 s{sTO}, s{sTO}, 1')
    A(f's_cbranch_scc1 {lfail}')

NST = 10
def stamp(A, opt, i, hop=None):
    if opt.get('hopst'):
        if hop is None: return
        i = hop
    elif i is None: return
    if opt.get('stamps'): A(f"{'s_memrealtime' if opt.get('rt') else 's_memtime'} s[{78 + 2*i}:{79 + 2*i}]")
def stamp_accum(A, opt):
    if opt.get('stamps'):
        A('s_waitcnt lgkmcnt(0)')
        if opt.get('rawstep') is not None:
            l = A.label('noraw')
            A(f's_cmp_eq_u32 s{sStep}, {opt["rawstep"] + 1}')
            A(f's_cbranch_scc0 {l}')
            A(f's_lshl_b32 s{sT}, s{sB}, 5'); A(f's_add_u32 s{sT}, s{sT}, s{sH}')
            A(f's_lshl_b32 s{sT}, s{sT}, 2'); A(f's_add_u32 s{sT}, s{sT}, s{sW}')
            A(f's_lshl_b32 s{sT}, s{sT}, 6'); A(f's_add_u32 s{sT}, s{sT}, 0x06600000')
            A(f'v_mov_b32 v{vT0}, s{sT}')
            for i in range(NST):
                A(f'v_mov_b32 v{vT1}, s{78 + 2*i}')
                A(f'global_store_dword v{vT0}, v{vT1}, s[{sWS}:{sWS+1}] offset:{4*i}')
            A(f'{l}:')
        for i in range(NST - 1):
            A(f's_sub_u32 s{sT}, s{78 + 2*(i+1)}, s{78 + 2*i}')
            A(f's_add_u32 s{60 + i}, s{60 + i}, s{sT}')

class Lds:
    def __init__(self, A): self.A = A; self.q = []; self.done = -1
    def op(self, tag, ins): self.A(ins); self.q.append(tag)
    def mk(self, tag, ins): return lambda: self.op(tag, ins)
    def wait_ins(self, tags):
        last = max(len(self.q) - 1 - self.q[::-1].index(t) for t in tags)
        if last <= self.done: return None
        self.done = last
        n = len(self.q) - 1 - last
        assert n <= 15, n
        return f's_waitcnt lgkmcnt({n})'
    def need(self, *tags):
        w = self.wait_ins(tags)
        if w: self.A(w)
    def mkneed(self, *tags): return lambda: self.need(*tags)
    def drain(self): self.A('s_waitcnt lgkmcnt(0)'); self.done = len(self.q) - 1

def chain_role(A, opt):
    integ = opt.get('integ', 0)
    assert not (integ and opt.get('stamps'))
    K = {'Wq': 60, 'Wk': 62, 'Wv': 64, 'Wo': 66, 'mem0': 68}
    A('L_chain:')
    A(f's_mul_i32 s{sT}, s{sB}, 56')
    A(f's_add_u32 s{sA}, s0, s{sT}')
    A(f's_addc_u32 s{sA+1}, s1, 0')
    A(f's_load_dwordx2 s[{K["mem0"]}:{K["mem0"]+1}], s[{sA}:{sA+1}], 8')
    A(f's_load_dwordx4 s[60:63], s[{sA}:{sA+1}], 16')
    A(f's_load_dwordx4 s[64:67], s[{sA}:{sA+1}], 32')
    A('s_waitcnt lgkmcnt(0)')
    A(f's_lshl_b32 s{sT}, s{sH}, 8')
    for m in ['Wq', 'Wk', 'Wv']: add64(A, K[m], K[m], f's{sT}')
    A(f's_lshl_b32 s{sT}, s{sH}, 17')
    add64(A, K['Wo'], K['Wo'], f's{sT}')
    chain_setup_persistent(A)
    A(f's_mov_b32 s{sStep}, 0')
    A(f's_mov_b32 s{sTag}, 0')
    initial_bases(A)
    A.c('poison both partial slots and all four mem slots')
    for r in range(32, 36): A(f'v_mov_b32 v{r}, -1')
    for k in range(3):
        A(f'global_store_dwordx4 v{vPst}, v[32:35], s[{sP0[k]}:{sP0[k]+1}]')
        A(f'global_store_dwordx4 v{vPst}, v[32:35], s[{sP1[k]}:{sP1[k]+1}]')
    A(f's_mov_b64 exec, s[{sEX}:{sEX+1}]')
    for k in range(3):
        A(f'global_store_dword v{vMst}, v32, s[{sM[k]}:{sM[k]+1}]')
    A('s_mov_b64 exec, -1')
    if integ:
        A(f's_lshl_b32 s{sT}, s{sB}, 5'); A(f's_add_u32 s{sT}, s{sT}, s{sH}'); A(f's_lshl_b32 s{sT}, s{sT}, 6')
        A(f's_add_u32 s{sT}, s{sT}, {WS_FLM}')
        A(f'v_mov_b32 v30, s{sT}'); A('v_mov_b32 v31, 0')
        A(f'global_store_dword v30, v31, s[{sWS}:{sWS+1}] sc1')
    lend = A.label('wdone')
    labs = [A.label(f'w{w}') for w in range(4)]
    for w in range(1, 4):
        A(f's_cmp_eq_u32 s{sW}, {w}')
        A(f's_cbranch_scc1 {labs[w]}')
    for w in range(4):
        A(f'{labs[w]}:')
        chain_startup_weights(A, w, K, opt.get('cnt', 'nt'), opt)
        if w < 3: A(f's_branch {lend}')
    A(f'{lend}:')
    A('s_barrier')
    to = dict(opt); to['tracev'] = ('v30', 'v31')
    trace(A, to, 1)
    A('v_mov_b64 v[32:33], 0'); A('v_mov_b64 v[34:35], 0')
    A(f'ds_write_b128 v{vL16}, v[32:35] offset:{L_ZERO}')
    def kv_m0():
        A(f's_lshl_b32 s{sT}, s{sW}, 12')
        A(f's_add_u32 m0, s{sT}, s{sKVL}')
    def kv_dma(i): A(f'global_load_lds_dwordx4 v{vL16}, s[{sKV}:{sKV+1}] offset:{1024 * i} sc1')
    lw = A.label('clr')
    if integ:
        A(f'v_and_b32 v30, 7, v0'); A('v_lshlrev_b32 v30, 2, v30'); A('v_add_u32 v30, 32, v30')
    else:
        A(f's_lshl_b32 s{sT}, s{sB}, 2'); A(f's_add_u32 s{sT}, s{sT}, 32'); A(f'v_mov_b32 v30, s{sT}')
    A(f'{lw}:')
    A(f'global_load_dword v31, v30, s[{sDBG}:{sDBG+1}] sc1')
    A('s_waitcnt vmcnt(0)')
    A('v_cmp_gt_u32 vcc, 32, v31')
    timeout_check(A, 'L_fail')
    A(f's_cbranch_vccnz {lw}')
    if integ:
        A(f's_lshl_b32 s{sT}, s{sB}, 5'); A(f's_add_u32 s{sT}, s{sT}, s{sH}')
        A(f's_lshl_b32 s{sT+1}, s{sT}, 4'); A(f's_add_u32 s{sT+1}, s{sT+1}, {WS_FLK}'); add64(A, sFLK, sWS, f's{sT+1}')
        A(f's_lshl_b32 s{sT+1}, s{sT}, 6'); A(f's_add_u32 s{sT+1}, s{sT+1}, {WS_FLM}'); add64(A, sFLM, sWS, f's{sT+1}')
        A(f's_cmp_eq_u32 s{sW}, 3'); A(f's_cselect_b32 s{sFE}, 1, 0'); A(f's_mov_b32 s{sFE+1}, 0')
        A(f's_mov_b32 s{sNeed}, 1')
        lw = A.label('p1first')
        A(f'{lw}:')
        A('s_mov_b64 exec, 1')
        A(f'global_load_dword v31, v{vL16}, s[{sFLK}:{sFLK+1}] sc1')
        A('s_waitcnt vmcnt(0)')
        A('v_cmp_gt_u32 vcc, 1, v31')
        A('s_mov_b64 exec, -1')
        timeout_check(A, 'L_fail')
        A(f's_cbranch_vccnz {lw}')
        A('s_mov_b64 exec, 1')
        A(f'global_load_dword v{vFlag}, v{vL16}, s[{sFLK}:{sFLK+1}] offset:4 sc1')
        A('s_mov_b64 exec, -1')
    A(f's_mov_b32 s{sKVL}, {L_KV0}')
    kv_m0(); A('s_nop 0')
    for i in range(4): kv_dma(i)
    add64(A, sKV, sKV, 32 * 16384)
    A(f's_mov_b32 s{sKVL}, {L_KV1}')
    A('v_bfe_u32 v30, v0, 2, 2')
    A('v_and_b32 v31, 1, v0')
    A('v_lshl_add_u32 v30, v30, 1, v31')
    A('v_lshlrev_b32 v30, 10, v30')
    A('v_bfe_u32 v31, v0, 1, 1')
    A('v_lshl_add_u32 v30, v31, 6, v30')
    A('v_lshrrev_b32 v31, 4, v0')
    A('v_lshl_add_u32 v30, v31, 3, v30')
    A(f's_lshl_b32 s{sT}, s{sW}, 8')
    A(f'v_add_u32 v30, s{sT}, v30')
    m0 = K['mem0']
    A(f'global_load_dwordx2 v[32:33], v30, s[{m0}:{m0+1}]')
    A(f'global_load_dwordx2 v[34:35], v30, s[{m0}:{m0+1}] offset:32')
    A(f'global_load_dwordx2 v[36:37], v30, s[{m0}:{m0+1}] offset:128')
    A(f'global_load_dwordx2 v[38:39], v30, s[{m0}:{m0+1}] offset:160')
    A(f's_lshl_b32 s{sT}, s{sW}, 13')
    A(f's_add_u32 s{sT}, s{sT}, {L_VL}')
    A(f'v_add_u32 v{vVL}, s{sT}, v{vL16}')

    def seq(mf, fill):
        for i, m in enumerate(mf):
            m()
            ins = fill.get(i, [])
            for x in ins:
                if callable(x): x()
                else: A(x)
    def put(fill, slot, *ins): fill.setdefault(slot, []).extend(ins)
    Q = lambda ft, c: (lambda: Qm(A, ft, c))
    Kx = lambda ft, c: (lambda: Km(A, ft, c))
    V = lambda ft, c: (lambda: Vm(A, ft, c))
    def post_ops(acc, ft, dst):
        b = acc + 4 * ft
        return [f'v_add_f32 v{b}, v{b}, v{b+2}', f'v_add_f32 v{b+1}, v{b+1}, v{b+3}', f'v_cvt_pk_bf16_f32 v{dst}, v{b}, v{b+1}']
    for r in range(accQ, accQ + 24, 2): A(f'v_mov_b64 {v(r,2)}, 0')
    A('s_waitcnt vmcnt(0)')
    to = dict(opt); to['tracev'] = ('v30', 'v31')
    trace(A, to, 2)
    if opt.get('timing'):
        A('s_memtime s[70:71]'); A('s_memrealtime s[74:75]'); A('s_waitcnt lgkmcnt(0)')
    if opt.get('stamps'):
        for i in range(NST): A(f's_mov_b32 s{60 + i}, 0')
        A('s_mov_b32 s98, 0'); A('s_mov_b32 s99, 0')
    def delay(n):
        while n > 0:
            k = min(n, 4); A(f's_nop {4 * k - 1}'); n -= k
    KP = 96
    vm = [76, 78]
    slow = []

    def front(last, L, u=0):
        L.op('mw0', f'ds_write_b128 v{vM[0]}, {v(mA[0],4)}')
        L.op('mw1', f'ds_write_b128 v{vM[0]}, {v(mA[1],4)} offset:1024')
        if last: seq([Kx(0,0), Kx(1,0), Kx(0,1), Kx(1,1), V(0,0)], {})
        else: seq([Q(0,0), Q(1,0), Q(0,1), Q(1,1), Kx(0,0)], {})
        L.drain()
        A('s_barrier')
        stamp(A, opt, 1)
        if not last: cut(1)
        rd = []
        for i in range(1, 4):
            rd.append(L.mk(('m', 2*i), f'ds_read_b128 {v(mA[2*i],4)}, v{vM[i]}'))
            rd.append(L.mk(('m', 2*i+1), f'ds_read_b128 {v(mA[2*i+1],4)}, v{vM[i]} offset:1024'))
        vs = []
        for i in range(4):
            vs.append(L.mk(('vs', i, 0), f'ds_read_b128 {v(VSBUF[i],4)}, v{vVL} offset:{i * 2048}'))
            vs.append(L.mk(('vs', i, 1), f'ds_read_b128 {v(VSBUF[i]+4,4)}, v{vVL} offset:{i * 2048 + 1024}'))
        order = [(0,2), (1,2), (0,3), (1,3)] + [(ft, c) for c in range(4, 8) for ft in range(2)]
        rd[0](); rd[1]()
        if last:
            for x in rd[2:]: x()
            seq([V(1,0), V(0,1), V(1,1)], {})
            for x in vs: x()
            L.need(('m', 7))
            seq([Kx(ft, c) for c in range(2, 8) for ft in range(2)], {})
            L.drain()
            p0 = post_ops(accK, 0, vPub); p1 = post_ops(accK, 1, vPub + 1)
            seq([V(ft, c) for ft, c in order], {1: p0, 2: p1})
            return
        seq([Kx(1,0), Kx(0,1), Kx(1,1), V(0,0), V(1,0), V(0,1), V(1,1)], {0: [rd[2]], 1: [rd[3]], 2: [rd[4]], 3: [rd[5]]})
        f = {}
        L.need(('m', 2))
        for c in range(3, 8): put(f, 2 * (c - 2) - 1, L.mkneed(('m', c)))
        put(f, 0, kv_m0)
        if integ:
            def p1_check():
                lslow = A.label('p1slow'); lback = A.label('p1ok')
                A(f'v_readfirstlane_b32 s{sT+1}, v{vFlag}')
                if u == 2: A(f's_add_u32 s{sT+2}, s{sNeed}, 1')
                else: A(f's_mov_b32 s{sT+2}, s{sNeed}')
                A(f's_cmp_lt_u32 s{sT+1}, s{sT+2}')
                A(f's_cbranch_scc1 {lslow}')
                A(f'{lback}:')
                slow.append((lslow, lback, (u + 1) % 3))
            put(f, 1, p1_check)
            put(f, 9, 's_mov_b64 exec, 1', f'global_load_dword v{vFlag}, v{vL16}, s[{sFLK}:{sFLK+1}] offset:{4 * ((u + 2) % 3)} sc1', 's_mov_b64 exec, -1')
            put(f, 3, f'v_mov_b32 v{vT0}, s{sStep}')
            put(f, 5, f's_mov_b64 exec, s[{sFE}:{sFE+1}]', f'global_store_dword v{vL16}, v{vT0}, s[{sFLM}:{sFLM+1}] sc1', 's_mov_b64 exec, -1')
        if not opt.get('nodma'):
            for i in range(4): put(f, 2 + 2 * i, (lambda i=i: kv_dma(i)))
        put(f, 10, f's_add_u32 s{sKV}, s{sKV}, {32 * 16384}', f's_addc_u32 s{sKV+1}, s{sKV+1}, 0')
        put(f, 11, f's_xor_b32 s{sKVL}, s{sKVL}, {L_KV0 ^ L_KV1}')
        seq([Q(ft, c) for c in range(2, 8) for ft in range(2)], f)
        f = {}
        qr = [L.mk(('q', ks, jj), f'ds_read_b64_tr_b16 {v(qf[ks] + 2*jj, 2)}, v{vQr} offset:{ks * 512 + jj * 128}') for ks in range(4) for jj in range(2)]
        p0 = post_ops(accQ, 0, vT0); p1 = post_ops(accQ, 1, vT1)
        put(f, 0, p0[0], p0[1]); put(f, 1, p0[2], L.mk('qw0', f'ds_write_b32 v{vQw}, v{vT0}'), p1[0])
        put(f, 2, p1[1], p1[2], L.mk('qw1', f'ds_write_b32 v{vQw}, v{vT1} offset:256'))
        put(f, 3, vs[0]); put(f, 4, vs[1]); put(f, 5, vs[2]); put(f, 6, vs[3])
        put(f, 7, L.mkneed('qw1'), 's_barrier')
        put(f, 8, qr[0], vs[4]); put(f, 9, qr[1], vs[5]); put(f, 10, qr[2], vs[6]); put(f, 11, qr[3], vs[7])
        seq([Kx(ft, c) for c in range(2, 8) for ft in range(2)], f)
        stamp(A, opt, 2)
        cut(2)
        f = {}
        kxr = lambda c: L.mk(('kx', c), f'ds_read_b128 {v(mA[c],4)}, v{vKX} offset:{1024 * c}')
        p0 = post_ops(accK, 0, vPub); p1 = post_ops(accK, 1, vPub + 1)
        L.need(('vs', 1, 1))
        put(f, 0, qr[4], p0[0]); put(f, 1, qr[5], p0[1], L.mkneed(('vs', 2, 1)))
        put(f, 2, p0[2], L.mk('kw0', f'ds_write_b32 v{vKw}, v{vPub}'), L.mkneed(('vs', 3, 1)))
        put(f, 3, qr[6], p1[0]); put(f, 4, qr[7], p1[1], kxr(2))
        put(f, 5, p1[2], L.mk('kw1', f'ds_write_b32 v{vKw}, v{vPub+1} offset:512'), kxr(3))
        put(f, 6, kxr(0), kxr(1)); put(f, 7, kxr(4)); put(f, 8, kxr(5)); put(f, 10, kxr(6)); put(f, 11, kxr(7))
        seq([V(ft, c) for ft, c in order], f)
        stamp(A, opt, 3)
        cut(3)

    def wo_fetch_ops(t, ks2, buf):
        base = vWoB if ks2 else vWoA
        i = TL.index(t)
        return [f'ds_read_b128 {v(buf,4)}, v{base} offset:{i*2048}', f'ds_read_b128 {v(buf+4,4)}, v{base} offset:{i*2048+1024}']

    class Cut(Exception): pass
    def cut(k):
        if opt.get('cut') == k:
            A('s_waitcnt lgkmcnt(0)')
            for r in range(64, 88, 2): A(f'v_mov_b64 {v(r,2)}, 0')
            A(f's_add_u32 s{sStep}, s{sStep}, 1')
            A('s_barrier')
            raise Cut()
    def step(u):
        try: step_(u)
        except Cut: pass
    def step_(u):
        stamp(A, opt, 0)
        if opt.get('dbgmem'):
            A(f's_lshl_b32 s{sT}, s{sB}, 6')
            A(f's_add_u32 s{sT}, s{sT}, s{sStep}')
            A(f's_lshl_b32 s{sT}, s{sT}, 13')
            A(f's_add_u32 s{sT}, s{sT}, {WS_DBGM}')
            add64(A, sA, sWS, f's{sT}')
            A(f'global_store_dwordx4 v{vM[0]}, {v(mA[0],4)}, s[{sA}:{sA+1}]')
            A(f'global_store_dwordx4 v{vM[0]}, {v(mA[1],4)}, s[{sA}:{sA+1}] offset:1024')
        L = Lds(A)
        front(False, L, u)
        L.need('kw1', ('q', 3, 1))
        A('s_barrier')
        kr = [L.mk(('k', ks, jj), f'ds_read_b64_tr_b16 {v(kf[ks] + 2*jj, 2)}, v{vKr} offset:{ks * 1024 + jj * 256}') for ks in range(4) for jj in range(2)]
        def Sxm(i):
            kt, ks = i >> 2, i & 3
            c = '0' if i in (2, 4) else v(Sx[kt], 4)
            return lambda: A(f'v_mfma_f32_16x16x32_bf16 {v(Sx[kt],4)}, {v(mA[i],4)}, {v(qf[ks],4)}, {c}')
        def Smm(ks):
            c = '0' if ks == 0 else v(Sm, 4)
            return lambda: A(f'v_mfma_f32_16x16x32_bf16 {v(Sm,4)}, {v(kf[ks],4)}, {v(qf[ks],4)}, {c}')
        f = {}
        xo = [2, 3, 0, 1, 4, 5, 6, 7]
        kr[0](); kr[1]()
        L.need(('kx', 3))
        for i in range(6): put(f, i, kr[2 + i])
        for i in range(1, 7): put(f, i, L.mkneed(('kx', xo[i + 1])))
        vxf = [40, 44]
        put(f, 6, L.mk('vx0', f'ds_read_b128 {v(vxf[0],4)}, v{vVX}'))
        put(f, 7, L.mk('vx1', f'ds_read_b128 {v(vxf[1],4)}, v{vVX} offset:1024'), L.mkneed(('k', 0, 1)))
        seq([Sxm(i) for i in xo], f)
        WB = [48, 56, 32, 40, 104, 88]
        wacc = [72, 76, 80, 96, 100, 104, 108, 88]
        f = {}
        pv0 = post_ops(accV, 0, vT0); pv1 = post_ops(accV, 1, vT1)
        put(f, 0, pv0[0], pv0[1], L.mkneed(('k', 1, 1)))
        put(f, 1, pv0[2], pv1[0], L.mkneed(('k', 2, 1)))
        put(f, 2, pv1[1], pv1[2], L.mkneed(('k', 3, 1)))
        if not opt.get('nopub'): put(f, 3, f'global_store_dwordx4 v{vL16}, {v(vPub,4)}, s[{sKMk}:{sKMk+1}] sc1')
        seq([Smm(ks) for ks in range(4)], f)
        A(f'v_mov_b32 v{vm[0]}, v{vT0}'); A(f'v_mov_b32 v{vm[0]+1}, 0')
        A(f'v_mov_b32 v{vm[1]}, v{vT1}'); A(f'v_mov_b32 v{vm[1]+1}, 0')
        w0 = wo_fetch_ops(0, 0, WB[0]); w1 = wo_fetch_ops(0, 1, WB[1]); w2 = wo_fetch_ops(1, 0, WB[2])
        A(w0[0]); A(w0[1])
        stamp(A, opt, 4)
        cut(4)
        sx = [Sx[0] + r for r in range(4)] + [Sx[1] + r for r in range(4)]
        A(f'v_max3_f32 v{vT0}, v{sx[0]}, v{sx[1]}, v{sx[2]}')
        A(f'v_max3_f32 v{vT1}, v{sx[3]}, v{sx[4]}, v{sx[5]}')
        A(f'v_max3_f32 v{vT0}, v{vT0}, v{sx[6]}, v{sx[7]}')
        A(f'v_max3_f32 v{vT0}, v{vT0}, v{Sm}, v{Sm+1}')
        A(f'v_max_f32 v{vT0}, v{vT0}, v{vT1}')
        A(f'v_mov_b32 v{vT1}, v{vT0}')
        A(w1[0]); A(w1[1])
        A(f'v_permlane16_swap_b32 v{vT0}, v{vT1}')
        A(f'v_max_f32 v{vT0}, v{vT0}, v{vT1}')
        A(f'v_mov_b32 v{vT1}, v{vT0}')
        A(w2[0]); A(w2[1])
        A(f'v_permlane32_swap_b32 v{vT0}, v{vT1}')
        A(f'v_max_f32 v{vT0}, v{vT0}, v{vT1}')
        A(f'v_mul_f32 v{vT0}, s{sC}, v{vT0}')
        if opt.get('pk', 1):
            for r in [Sx[0], Sx[0] + 2, Sx[1], Sx[1] + 2, Sm]:
                A(f'v_pk_fma_f32 {v(r,2)}, {v(r,2)}, s[{sC}:{sC+1}], {v(vT0,2)} op_sel_hi:[1,0,0] neg_lo:[0,0,1] neg_hi:[0,0,1]')
        else:
            for r in sx + [Sm, Sm + 1]: A(f'v_fma_f32 v{r}, v{r}, s{sC}, -v{vT0}')
        Px, Pm = 88, 92
        for r in sx + [Sm, Sm + 1]: A(f'v_exp_f32 v{r}, v{r}')
        A(f'v_mov_b32 v{Pm+1}, 0')
        A(f'v_cvt_pk_bf16_f32 v{Px}, v{sx[0]}, v{sx[1]}')
        A(f'v_cvt_pk_bf16_f32 v{Px+1}, v{sx[2]}, v{sx[3]}')
        A(f'v_cvt_pk_bf16_f32 v{Px+2}, v{sx[4]}, v{sx[5]}')
        A(f'v_cvt_pk_bf16_f32 v{Px+3}, v{sx[6]}, v{sx[7]}')
        A(f'v_cvt_pk_bf16_f32 v{Pm}, v{Sm}, v{Sm+1}')
        cut(5)
        oacc = [64, 68]; lacc = 72
        A('s_waitcnt lgkmcnt(6)')
        w3 = wo_fetch_ops(1, 1, WB[3]); w4 = wo_fetch_ops(2, 0, WB[4]); w5 = wo_fetch_ops(2, 1, WB[5])
        A(f'v_mfma_f32_16x16x32_bf16 {v(lacc,4)}, {v(ONE,4)}, {v(Px,4)}, 0')
        for ft in range(2):
            A(f'v_mfma_f32_16x16x32_bf16 {v(oacc[ft],4)}, {v(vxf[ft],4)}, {v(Px,4)}, 0')
            A(w4[ft])
        A(f'v_mfma_f32_16x16x16_bf16 {v(lacc,4)}, {v(ONE,2)}, {v(Pm,2)}, {v(lacc,4)}')
        for ft in range(2):
            A(f'v_mfma_f32_16x16x16_bf16 {v(oacc[ft],4)}, {v(vm[ft],2)}, {v(Pm,2)}, {v(oacc[ft],4)}')
            A(w3[ft])
        A('s_nop 1')
        A(f'v_rcp_f32 v{vT0}, v{lacc}')
        A(w5[0]); A(w5[1])
        A('s_nop 3')
        for r in range(4): A(f'v_cndmask_b32 v{64 + r}, v{68 + r}, v{64 + r}, s[{sEX}:{sEX+1}]')
        for r in range(0, 4, 2): A(f'v_pk_mul_f32 {v(64 + r, 2)}, {v(64 + r, 2)}, {v(vT0,2)} op_sel_hi:[1,0]')
        A('v_cvt_pk_bf16_f32 v64, v64, v65')
        A('v_cvt_pk_bf16_f32 v65, v66, v67')
        cut(6)
        A(f'ds_write_b64 v{vOw}, v[64:65]')
        A('s_waitcnt lgkmcnt(0)')
        A('s_barrier')
        stamp(A, opt, 5)
        cut(7)
        of = [64, 68]
        A(f'ds_read_b128 {v(of[0],4)}, v{vL16}')
        A(f'ds_read_b128 {v(of[1],4)}, v{vL16} offset:1024')
        for a0 in wacc[:5]:
            A(f'v_mov_b64 {v(a0,2)}, 0'); A(f'v_mov_b64 {v(a0+2,2)}, 0')
        outr = [84, 28]
        bufof = {(0,0): WB[0], (0,1): WB[1], (1,0): WB[2], (1,1): WB[3], (2,0): WB[4], (2,1): WB[5],
                 (6,0): WB[0], (6,1): WB[1], (7,0): WB[2], (7,1): WB[3]}
        bufof.update(WO_HOME)
        def wo_post_ops(t):
            acc = wacc[t]; o = outr[t >> 2] + (t & 3)
            r = [f'v_add_f32 v{acc}, v{acc}, v{acc+2}', f'v_add_f32 v{acc+1}, v{acc+1}, v{acc+3}', f'v_cvt_pk_bf16_f32 v{o}, v{acc}, v{acc+1}']
            return r
        refill = []
        for (t, ks2) in [(6,0), (6,1), (7,0), (7,1)]:
            for j, x in enumerate(wo_fetch_ops(t, ks2, bufof[(t, ks2)])): refill.append((x, ('w', t, ks2, j)))
        issued = [('o', 0), ('o', 1)]
        done = [-1]
        def need(tags):
            last = max(issued.index(t) for t in tags)
            if last > done[0]:
                A(f's_waitcnt lgkmcnt({len(issued) - 1 - last})')
                done[0] = last
        todo = []
        nref = 0
        for op in range(16):
            t, ks2 = op >> 1, op & 1
            acc = wacc[t]
            req = []
            if op < 2: req.append(('o', op))
            if t >= 6: req += [('w', t, ks2, 0), ('w', t, ks2, 1)]
            if t >= 5 and ks2 == 0: req.append(('z', t))
            if req: need(req)
            A(f'v_smfmac_f32_16x16x64_bf16 {v(acc,4)}, {v(of[ks2],4)}, {v(bufof[(t,ks2)],8)}, v{vIDX}')
            if nref < 8 and (nref >> 1) <= op:
                if 'ds' in opt.get('woskip', ''): A('s_nop 0')
                else: A(refill[nref][0])
                issued.append(refill[nref][1]); nref += 1
            if op in (5, 6, 7):
                A(f'ds_read_b128 {v(wacc[op],4)}, v{vL16} offset:{L_ZERO}'); issued.append(('z', op))
            if ks2 == 1 and t >= 1 and 'valu' not in opt.get('woskip', ''): todo += wo_post_ops(t - 1)
            for _ in range({3: 1, 4: 1}.get(op, 2) if op < 15 else 99):
                if todo: A(todo.pop(0))
            if op == 10:
                for x in todo: A(x)
                todo = []
                A(f'v_and_or_b32 v{outr[0]}, v{outr[0]}, -2, s{sTag}')
                if 'st' not in opt.get('woskip', ''): A(f'global_store_dwordx4 v{vPst}, {v(outr[0],4)}, s[{sP0[u]}:{sP0[u]+1}]')
        A('s_nop 5')
        for x in wo_post_ops(7): A(x)
        A(f'v_and_or_b32 v{outr[1]}, v{outr[1]}, -2, s{sTag}')
        if 'st' not in opt.get('woskip', ''): A(f'global_store_dwordx4 v{vPst}, {v(outr[1],4)}, s[{sP1[u]}:{sP1[u]+1}]')
        stamp(A, opt, 6, 0)
        cut(8)
        if opt.get('nohop'):
            for r in range(64, 88, 2): A(f'v_mov_b64 {v(r,2)}, 0')
            A(f's_add_u32 s{sStep}, s{sStep}, 1')
            A('s_barrier')
            for i in range(7, 10): stamp(A, opt, i)
            stamp_accum(A, opt)
            return
        SEL = 64; RA = [32, 36, 40, 44]; RACC = 68
        lnr = A.label('nored')
        for r in range(72, 88, 2): A(f'v_mov_b64 {v(r,2)}, 0')
        A(f's_cmp_ge_u32 s{sW}, 2'); A(f's_cbranch_scc1 {lnr}')
        def issue1():
            for i in range(4):
                b = sP0[u] if i < 2 else sPr[u]
                A(f'global_load_dwordx4 {v(RA[i],4)}, v{vRed}, s[{b}:{b+1}] offset:{2048 * (i & 1)} sc1')
        A(f'v_bfe_u32 v{vT0}, v{vL16}, 4, 3')
        A(f'v_lshrrev_b32 v{vT1}, 1, v{vT0}')
        A(f'v_and_b32 v{vT0}, 1, v{vT0}')
        A(f'v_lshlrev_b32 v{vT0}, 4, v{vT0}')
        A(f'v_mov_b32 v68, 0x3f80')
        A(f'v_lshlrev_b32 v{vT0}, v{vT0}, v68')
        for d in range(4):
            A(f'v_cmp_eq_u32 vcc, {d}, v{vT1}')
            A('s_nop 1')
            A(f'v_cndmask_b32 v{SEL + d}, 0, v{vT0}, vcc')
        delay(opt.get('d1', 0))
        issue1()
        stamp(A, opt, None, 1)
        lp = A.label('poll1'); lok = A.label('ok1')
        A(f'{lp}:')
        for rnd in range(2):
            for i in range(4):
                A(f's_waitcnt vmcnt({3 - i})')
                if rnd == 0 and i == 0: stamp(A, opt, None, 2)
                c = '0' if i == 0 else v(RACC, 4)
                A(f'v_mfma_f32_16x16x32_bf16 {v(RACC,4)}, {v(RA[i],4)}, {v(SEL,4)}, {c}')
                if i == 0: A(f'v_xor_b32 v{vT0}, s{sTag}, v{RA[0]}')
                else: A(f'v_bitop3_b32 v{vT0}, v{vT0}, v{RA[i]}, s{sTag} bitop3:0xf6')
            A(f'v_and_b32 v{vT0}, 1, v{vT0}')
            A(f'v_cmp_ne_u32 vcc, 0, v{vT0}')
            if rnd == 0: stamp(A, opt, None, 3)
            if opt.get('stamps'): A('s_add_u32 s98, s98, 1')
            A(f's_cbranch_vccz {lok}')
            issue1()
        timeout_check(A, 'L_fail')
        A(f's_branch {lp}')
        A(f'{lok}:')
        A('s_nop 5')
        A(f'v_add_f32 v{RACC}, v{RACC}, v{RACC+1}')
        A(f'v_add_f32 v{RACC+2}, v{RACC+2}, v{RACC+3}')
        A(f'v_cvt_pk_bf16_f32 v{vT0}, v{RACC}, v{RACC+2}')
        A(f'v_min_u32 v{vT0}, -2, v{vT0}')
        A(f's_mov_b64 exec, s[{sEX}:{sEX+1}]')
        mr = sM[(u + 1) % 3]; mp = sM[(u + 2) % 3]
        A(f'global_store_dword v{vMst}, v{vT0}, s[{mr}:{mr+1}]')
        A(f'v_mov_b32 v{vT1}, -1')
        A(f'global_store_dword v{vMst}, v{vT1}, s[{mp}:{mp+1}]')
        A('s_mov_b64 exec, -1')
        A(f'{lnr}:')
        stamp(A, opt, 7, 5)
        stamp(A, opt, 8, 6)
        def pollA():
            A(f'global_load_dwordx4 {v(mA[0],4)}, v{vM[0]}, s[{mr}:{mr+1}] sc1')
            A(f'global_load_dwordx4 {v(mA[1],4)}, v{vM[0]}, s[{mr}:{mr+1}] offset:1024 sc1')
        A('s_barrier')
        for r in range(64, 72, 2): A(f'v_mov_b64 {v(r,2)}, 0')
        delay(opt.get('d2', 0))
        pollA()
        A(f's_add_u32 s{sStep}, s{sStep}, 1')
        A(f'v_xor_b32 v{vKX}, {L_KV0 ^ L_KV1}, v{vKX}')
        A(f'v_xor_b32 v{vVX}, {L_KV0 ^ L_KV1}, v{vVX}')
        add64(A, sKMk, sKMk, 32 * 8192)
        stamp(A, opt, None, 7)
        lA = A.label('chkA'); lgo = A.label('go')
        A(f'{lA}:')
        for rnd in range(3):
            A('s_waitcnt vmcnt(0)')
            A(f'v_max3_u32 v{vT0}, v32, v34, v36')
            A(f'v_max_u32 v{vT0}, v{vT0}, v38')
            A(f'v_cmp_eq_u32 vcc, -1, v{vT0}')
            if rnd == 0: stamp(A, opt, None, 8)
            A(f's_cbranch_vccz {lgo}')
            if opt.get('stamps'): A('s_add_u32 s99, s99, 1')
            pollA()
        timeout_check(A, 'L_fail')
        A(f's_branch {lA}')
        A(f'{lgo}:')
        stamp(A, opt, 9, 9)
        stamp_accum(A, opt)

    A('.p2align 6')
    A('L_step:')
    for u in range(3): step(u)
    A(f's_xor_b32 s{sTag}, s{sTag}, 1')
    if integ: A(f's_add_u32 s{sNeed}, s{sNeed}, 1')
    A(f's_cmp_lt_u32 s{sStep}, 63')
    A('s_cbranch_scc1 L_step')
    if opt.get('dbgmem'):
        A(f's_lshl_b32 s{sT}, s{sB}, 6')
        A(f's_add_u32 s{sT}, s{sT}, s{sStep}')
        A(f's_lshl_b32 s{sT}, s{sT}, 13')
        A(f's_add_u32 s{sT}, s{sT}, {WS_DBGM}')
        add64(A, sA, sWS, f's{sT}')
        A(f'global_store_dwordx4 v{vM[0]}, {v(mA[0],4)}, s[{sA}:{sA+1}]')
        A(f'global_store_dwordx4 v{vM[0]}, {v(mA[1],4)}, s[{sA}:{sA+1}] offset:1024')
    trace(A, to, 3)
    front(True, Lds(A))
    A('s_nop 7')
    pv0 = post_ops(accV, 0, vT0); pv1 = post_ops(accV, 1, vT1)
    for x in pv0 + pv1: A(x)
    if integ:
        A(f'v_mov_b32 v30, s{sStep}')
        A(f's_mov_b64 exec, s[{sFE}:{sFE+1}]'); A(f'global_store_dword v{vL16}, v30, s[{sFLM}:{sFLM+1}] sc1'); A('s_mov_b64 exec, -1')
    A(f'global_store_dwordx4 v{vL16}, {v(vPub,4)}, s[{sKMk}:{sKMk+1}] sc1')
    A('s_waitcnt vmcnt(0)')
    if integ:
        A('s_barrier')
        A('v_mov_b32 v30, 64')
        A(f's_mov_b64 exec, s[{sFE}:{sFE+1}]'); A(f'global_store_dword v{vL16}, v30, s[{sFLM}:{sFLM+1}] sc1'); A('s_mov_b64 exec, -1')
        A('s_waitcnt vmcnt(0)')
    trace(A, to, 4)
    if opt.get('timing'):
        A('s_memtime s[72:73]'); A('s_memrealtime s[76:77]'); A('s_waitcnt lgkmcnt(0)')
        A('s_sub_u32 s72, s72, s70'); A('s_sub_u32 s76, s76, s74')
        A('v_mov_b32 v32, s72'); A('v_mov_b32 v33, s76')
        A(f'v_mov_b32 v34, s{sTO}'); A('v_mov_b32 v35, s74')
        A(f's_lshl_b32 s{sT}, s{sB}, 5'); A(f's_add_u32 s{sT}, s{sT}, s{sH}')
        A(f's_lshl_b32 s{sT}, s{sT}, 2'); A(f's_add_u32 s{sT}, s{sT}, s{sW}')
        A(f's_lshl_b32 s{sT}, s{sT}, 4'); A(f's_add_u32 s{sT}, s{sT}, 0x06400000')
        A(f'v_mov_b32 v30, s{sT}')
        A('s_mov_b64 exec, 1')
        A(f'global_store_dwordx4 v30, v[32:35], s[{sWS}:{sWS+1}]')
        if opt.get('stamps'):
            A(f's_lshl_b32 s{sT}, s{sT}, 2')
            A(f's_and_b32 s{sT}, s{sT}, 0xffff')
            A(f's_add_u32 s{sT}, s{sT}, 0x06500000')
            A(f'v_mov_b32 v30, s{sT}')
            A('s_mov_b32 s70, s98'); A('s_mov_b32 s71, s99')
            for q in range(3):
                for r in range(4): A(f'v_mov_b32 v{32 + r}, s{60 + 4*q + r}')
                A(f'global_store_dwordx4 v30, v[32:35], s[{sWS}:{sWS+1}] offset:{16*q}')
                A('s_nop 1')
        A('s_waitcnt vmcnt(0)')
    A('s_endpgm')
    for lslow, lback, r in slow:
        A(f'{lslow}:')
        A('s_mov_b64 exec, 1')
        A(f'global_load_dword v{vFlag}, v{vL16}, s[{sFLK}:{sFLK+1}] offset:{4 * r} sc1')
        A('s_mov_b64 exec, -1')
        A('s_waitcnt vmcnt(0)')
        A(f'v_readfirstlane_b32 s{sT+1}, v{vFlag}')
        timeout_check(A, 'L_fail')
        A(f's_cmp_lt_u32 s{sT+1}, s{sT+2}')
        A(f's_cbranch_scc1 {lslow}')
        A(f's_branch {lback}')
```

```python
from asmlib import *
from chain import (WS_KV, WS_KM, sWS, sDBG, sW, sH, sB, sTO, add64, timeout_check, f32bits, Lds, SM_SCALE_LOG2E)

WS_FLK = 0x07000000
WS_FLM = 0x07001000
WS_FLR = 0x07003000
WS_FLA = 0x07004000
WS_G   = 0x07010000
WS_FP  = 0x07100000
WS_AB  = 0x08200000
LW_X0  = 0
LW_X1  = 32768
LW_Q   = 65536
LW_O   = 73728
LW_K   = 81920
LW_KV0 = 86016
LW_KV1 = 102400
WS_FDUM = 0x08700000
LW_STG = 32768
sR = 13
sXCC = 3
sA = 14; sA2 = 16
sX = 18
sSeg = 20
sI = 21
sN = 22
sT = 54
sXL = 23
sKVo = 24
vL16 = 1
vXG = 2
vXR = [4, 5, 6, 7]
vT0, vT1 = 8, 9

def x_setup(A):
    A(f'v_lshlrev_b32 v{vL16}, 4, v0')
    A(f'v_lshrrev_b32 v{vT0}, 3, v0')
    A(f's_lshl_b32 s{sT}, s{sW}, 3')
    A(f'v_add_u32 v{vT0}, s{sT}, v{vT0}')
    A(f'v_bfe_u32 v{vT1}, v{vT0}, 1, 3')
    A(f'v_and_b32 v{vXG}, 7, v0')
    A(f'v_xor_b32 v{vXG}, v{vXG}, v{vT1}')
    A(f'v_lshlrev_b32 v{vXG}, 4, v{vXG}')
    A(f'v_lshl_add_u32 v{vXG}, v{vT0}, 10, v{vXG}')
    A(f'v_and_b32 v{vT0}, 31, v0')
    A(f'v_bfe_u32 v{vT1}, v{vT0}, 1, 3')
    A(f'v_lshrrev_b32 v10, 5, v0')
    A(f'v_xor_b32 v{vT1}, v{vT1}, v10')
    A(f'v_lshlrev_b32 v{vT1}, 4, v{vT1}')
    A(f'v_and_b32 v10, 7, v{vT0}')
    A(f'v_lshl_add_u32 v{vT1}, v10, 7, v{vT1}')
    A(f'v_lshrrev_b32 v10, 3, v{vT0}')
    A(f'v_lshl_add_u32 v{vXR[0]}, v10, 13, v{vT1}')
    for k in range(1, 4): A(f'v_xor_b32 v{vXR[k]}, {32 * k}, v{vXR[0]}')

def x_dma(A, seg_sgpr, lds_base):
    A(f's_lshl_b32 s{sT}, s{seg_sgpr}, 15')
    add64(A, sA, sX, f's{sT}')
    A(f's_lshl_b32 s{sT}, s{sW}, 13')
    A(f's_add_u32 s{sT}, s{sT}, {lds_base}')
    for kc in range(8):
        A(f's_add_u32 m0, s{sT}, {kc * 1024 - kc * 128}')
        A('s_nop 0')
        A(f'global_load_lds_dwordx4 v{vXG}, s[{sA}:{sA+1}] offset:{kc * 128}')

def load_qkv_weights(A, w, srcs, dsts, nt='nt', depth=8, announce=False):
    vG = [12, 13, 14, 15]; vR = 16
    A(f'v_lshrrev_b32 v{vT0}, 4, v0')
    A(f'v_lshlrev_b32 v{vT1}, 2, v{vT0}')
    A(f'v_and_b32 v10, 15, v0')
    A(f'v_xor_b32 v10, v10, v{vT1}')
    A(f'v_lshlrev_b32 v10, 4, v10')
    A(f'v_add_u32 v{vT0}, {16 * w}, v{vT0}')
    A(f'v_lshl_add_u32 v{vG[0]}, v{vT0}, 13, v10')
    for ii in range(1, 4): A(f'v_add_u32 v{vG[ii]}, {ii * 32768}, v{vG[0]}')
    A(f'v_bfe_u32 v{vT0}, v0, 2, 2')
    A(f'v_xor_b32 v{vT1}, {w}, v{vT0}')
    A(f'v_lshlrev_b32 v{vT1}, 6, v{vT1}')
    A(f'v_lshrrev_b32 v10, 5, v0')
    A(f'v_lshl_add_u32 v{vT0}, v10, 3, v{vT0}')
    A(f'v_lshl_add_u32 v{vT1}, v{vT0}, 8, v{vT1}')
    A(f'v_bfe_u32 v10, v0, 4, 1')
    A(f'v_lshl_add_u32 v{vT1}, v10, 5, v{vT1}')
    A(f'v_and_b32 v10, 3, v0')
    A(f'v_lshl_add_u32 v11, v10, 3, v{vT1}')
    def dma(m, c):
        add64(A, sA, srcs[m], c * 64 * 8192)
        for ii in range(4):
            A(f's_mov_b32 m0, {LW_STG + c * 16384 + w * 4096 + ii * 1024}')
            A('s_nop 0')
            A(f'global_load_lds_dwordx4 v{vG[ii]}, s[{sA}:{sA+1}] {nt}')
    seq_ = [(m, c) for m in range(len(srcs)) for c in range(8)]
    for k in range(depth): dma(*seq_[k])
    for k, (m, c) in enumerate(seq_):
        inflight = min(depth, len(seq_) - k)
        A(f's_waitcnt vmcnt({(inflight - 1) * 4})')
        A('s_barrier')
        if announce and k == 0 and w == 0:
            A(f's_lshl_b32 s{sT}, s{sXCC}, 2'); A(f's_add_u32 s{sT}, s{sT}, 32')
            A(f'v_mov_b32 v{vT0}, s{sT}'); A(f'v_mov_b32 v{vT1}, 1')
            A('s_mov_b64 exec, 1')
            A(f'global_atomic_add v{vT0}, v{vT1}, s[{sDBG}:{sDBG+1}] sc1')
            A('s_mov_b64 exec, -1')
        A(f'v_add_u32 v{vR}, {LW_STG + c * 16384}, v11')
        for ksl in range(4):
            for jj in range(2):
                r = dsts[m] + (4 * c + ksl) * 4 + 2 * jj
                A(f'ds_read_b64_tr_b16 {a_(r, 2)}, v{vR} offset:{ksl * 4096 + jj * 1024}')
        A('s_waitcnt lgkmcnt(0)')
        A('s_barrier')
        if k + depth < len(seq_): dma(*seq_[k + depth])

def p1_phase(A, opt):
    K = {'Wk': 60, 'Wv': 62}
    A('L_p1:')
    A(f's_mul_i32 s{sT}, s{sB}, 56')
    A(f's_add_u32 s{sA}, s0, s{sT}')
    A(f's_addc_u32 s{sA+1}, s1, 0')
    A(f's_load_dwordx4 s[60:63], s[{sA}:{sA+1}], 24')
    A(f's_load_dwordx2 s[{sX}:{sX+1}], s[0:1], 0')
    A('s_waitcnt lgkmcnt(0)')
    A(f's_lshl_b32 s{sT}, s{sH}, 8')
    for m in K: add64(A, K[m], K[m], f's{sT}')
    x_setup(A)
    A.c('first x tile into buffer 0 (outside the staging area)')
    A(f's_mov_b32 s{sSeg}, s{sR}')
    x_dma(A, sSeg, LW_X0)
    lend = A.label('p1w'); labs = [A.label(f'p1w{w}') for w in range(4)]
    for w in range(1, 4):
        A(f's_cmp_eq_u32 s{sW}, {w}'); A(f's_cbranch_scc1 {labs[w]}')
    for w in range(4):
        A(f'{labs[w]}:')
        load_qkv_weights(A, w, [K['Wk'], K['Wv']], [0, 128], opt.get('wnt', 'nt'), opt.get('wdepth', 6), announce=(opt['mode'] == 'full'))
        if w < 3: A(f's_branch {lend}')
    A(f'{lend}:')
    to = dict(opt); to['tracev'] = ('v30', 'v31')
    trace(A, to, 1)
    vKs, vVs = 10, 11
    A(f'v_and_b32 v{vT0}, 15, v0')
    A(f'v_lshrrev_b32 v{vT1}, 5, v0')
    A(f'v_lshl_add_u32 v{vT0}, v{vT1}, 4, v{vT0}')
    A(f'v_lshlrev_b32 v{vT0}, 4, v{vT0}')
    A(f'v_bfe_u32 v{vT1}, v0, 4, 1')
    A(f'v_lshl_add_u32 v{vKs}, v{vT1}, 12, v{vT0}')
    A(f's_lshl_b32 s{sT}, s{sW}, 10')
    A(f'v_add_u32 v{vKs}, s{sT}, v{vKs}')
    A(f'v_lshl_add_u32 v{vVs}, v{vT1}, 10, v{vT0}')
    A(f's_lshl_b32 s{sT}, s{sW}, 11')
    A(f's_add_u32 s{sT}, s{sT}, 8192')
    A(f'v_add_u32 v{vVs}, s{sT}, v{vVs}')
    A(f's_cmp_eq_u32 s{sR}, 0')
    A(f's_cselect_b32 s{sN}, 22, 21')
    A(f's_mov_b32 s{sI}, 0')
    A(f's_mov_b32 s{sXL}, {LW_X0}')
    sFl = 26
    A(f's_lshl_b32 s{sT}, s{sB}, 5'); A(f's_add_u32 s{sT}, s{sT}, s{sH}')
    A(f's_lshl_b32 s{sT}, s{sT}, 4')
    A(f's_lshl_b32 s{sT+1}, s{sR}, 2'); A(f's_add_u32 s{sT}, s{sT}, s{sT+1}')
    A(f's_add_u32 s{sT}, s{sT}, {WS_FLK}')
    add64(A, sFl, sWS, f's{sT}')
    accK, accV = 32, 48
    xf = [64, 68, 72, 76]
    ok = 16; ov = 24
    A('.p2align 6')
    A('L_p1_loop:')
    A('s_waitcnt vmcnt(4)')
    A('s_barrier')
    l = A.label('nofl')
    A(f's_cmp_lt_u32 s{sI}, 2'); A(f's_cbranch_scc1 {l}')
    A(f's_cmp_lg_u32 s{sW}, 0'); A(f's_cbranch_scc1 {l}')
    A(f's_sub_u32 s{sT}, s{sI}, 1')
    A(f'v_mov_b32 v{vT0}, s{sT}'); A(f'v_mov_b32 v{vT1}, 0')
    A('s_mov_b64 exec, 1')
    A(f'global_store_dword v{vT1}, v{vT0}, s[{sFl}:{sFl+1}] sc1')
    A('s_mov_b64 exec, -1')
    A(f'{l}:')
    l = A.label('nonext')
    A(f's_add_u32 s{sT+2}, s{sI}, 1')
    A(f's_cmp_ge_u32 s{sT+2}, s{sN}'); A(f's_cbranch_scc1 {l}')
    A(f's_add_u32 s{sT+2}, s{sSeg}, 3')
    A(f's_xor_b32 s{sT+3}, s{sXL}, {LW_X0 ^ LW_X1}')
    x_dma(A, sT + 2, f's{sT+3}')
    A(f'{l}:')
    A(f's_lshl_b32 s{sT}, s{sB}, 6'); A(f's_add_u32 s{sT}, s{sT}, s{sSeg}')
    A(f's_lshl_b32 s{sT}, s{sT}, 5'); A(f's_add_u32 s{sT}, s{sT}, s{sH}')
    A(f's_lshl_b32 s{sT}, s{sT}, 14')
    add64(A, sKVo, sWS, f's{sT}')
    rx = [12, 13, 14, 15]
    for k in range(4): A(f'v_add_u32 v{rx[k]}, s{sXL}, v{vXR[k]}')
    def xr(ks): return f'ds_read_b128 {v(xf[ks & 3], 4)}, v{rx[ks & 3]} offset:{(ks >> 2) * 1024}'
    for ks in range(3): A(xr(ks))
    for ks in range(32):
        A(f's_waitcnt lgkmcnt({min(2, 31 - ks)})')
        ck = '0' if ks == 0 else v(accK, 16); cv = '0' if ks == 0 else v(accV, 16)
        A(f'v_mfma_f32_32x32x16_bf16 {v(accK,16)}, {a_(4*ks,4)}, {v(xf[ks & 3],4)}, {ck}')
        A(f'v_mfma_f32_32x32x16_bf16 {v(accV,16)}, {v(xf[ks & 3],4)}, {a_(128 + 4*ks,4)}, {cv}')
        if ks + 3 < 32: A(xr(ks + 3))
    A('s_nop 15'); A('s_nop 3')
    for i in range(8): A(f'v_cvt_pk_bf16_f32 v{ok + i}, v{accK + 2*i}, v{accK + 2*i + 1}')
    A(f'global_store_dwordx4 v{vKs}, {v(ok,4)}, s[{sKVo}:{sKVo+1}] sc1')
    A(f'global_store_dwordx4 v{vKs}, {v(ok+4,4)}, s[{sKVo}:{sKVo+1}] offset:512 sc1')
    for gq, qs in enumerate([(0, 2), (1, 3)]):
        for z, q in enumerate(qs):
            A(f'v_cvt_pk_bf16_f32 v{ov + 4*gq + 2*z}, v{accV + 4*q}, v{accV + 4*q + 1}')
            A(f'v_cvt_pk_bf16_f32 v{ov + 4*gq + 2*z + 1}, v{accV + 4*q + 2}, v{accV + 4*q + 3}')
    A(f'global_store_dwordx4 v{vVs}, {v(ov,4)}, s[{sKVo}:{sKVo+1}] sc1')
    A(f'global_store_dwordx4 v{vVs}, {v(ov+4,4)}, s[{sKVo}:{sKVo+1}] offset:512 sc1')
    if opt.get('gate', 1): gate_part(A, opt)
    A(f's_add_u32 s{sSeg}, s{sSeg}, 3')
    A(f's_xor_b32 s{sXL}, s{sXL}, {LW_X0 ^ LW_X1}')
    A(f's_add_u32 s{sI}, s{sI}, 1')
    A(f's_cmp_lt_u32 s{sI}, s{sN}')
    A('s_cbranch_scc1 L_p1_loop')
    trace(A, to, 2)
    A('s_waitcnt vmcnt(0)')
    A('s_barrier')
    l = A.label('nofl2')
    A(f's_cmp_lg_u32 s{sW}, 0'); A(f's_cbranch_scc1 {l}')
    A(f'v_mov_b32 v{vT0}, s{sN}'); A(f'v_mov_b32 v{vT1}, 0')
    A('s_mov_b64 exec, 1')
    A(f'global_store_dword v{vT1}, v{vT0}, s[{sFl}:{sFl+1}] sc1')
    A('s_mov_b64 exec, -1')
    A(f'{l}:')

def worker_clear(A):
    A(f'v_mov_b32 v{vT1}, 0')
    A('s_mov_b64 exec, 1')
    A(f's_lshl_b32 s{sT}, s{sB}, 5'); A(f's_add_u32 s{sT}, s{sT}, s{sH}'); A(f's_lshl_b32 s{sT}, s{sT}, 4')
    A(f's_lshl_b32 s{sT+1}, s{sR}, 2'); A(f's_add_u32 s{sT}, s{sT}, s{sT+1}'); A(f's_add_u32 s{sT}, s{sT}, {WS_FLK}')
    A(f'v_mov_b32 v{vT0}, s{sT}'); A(f'global_store_dword v{vT0}, v{vT1}, s[{sWS}:{sWS+1}] sc1')
    A(f's_lshl_b32 s{sT}, s{sXCC}, 5'); A(f's_add_u32 s{sT}, s{sT}, s{sH}'); A(f's_lshl_b32 s{sT}, s{sT}, 2')
    A(f's_add_u32 s{sT}, s{sT}, {WS_FLR}')
    A(f'v_mov_b32 v{vT0}, s{sT}'); A(f'global_store_dword v{vT0}, v{vT1}, s[{sWS}:{sWS+1}]')
    A('s_mov_b64 exec, -1')
    l = A.label('nopoi')
    A(f's_cmp_lg_u32 s{sB}, 1'); A(f's_cbranch_scc1 {l}')
    A('v_mov_b64 v[12:13], -1'); A('v_mov_b64 v[14:15], -1')
    A(f's_lshl_b32 s{sT}, s{sH}, 11'); A(f's_lshl_b32 s{sT+1}, s{sW}, 9'); A(f's_add_u32 s{sT}, s{sT}, s{sT+1}')
    A(f's_lshl_b32 s{sT+1}, s{sR}, 16'); A(f's_add_u32 s{sT}, s{sT}, s{sT+1}'); A(f's_add_u32 s{sT}, s{sT}, {WS_AB}')
    A(f'v_lshlrev_b32 v{vT0}, 4, v0'); A(f'v_add_u32 v{vT0}, s{sT}, v{vT0}')
    A('s_mov_b32 exec_hi, 0')
    for i in range(22):
        if i == 21:
            l2 = A.label('nolast'); A(f's_cmp_lg_u32 s{sR}, 0'); A(f's_cbranch_scc1 {l2}')
        A(f'global_store_dwordx4 v{vT0}, v[12:15], s[{sWS}:{sWS+1}] sc1')
        A(f'v_add_u32 v{vT0}, {3 * 65536}, v{vT0}')
        if i == 21: A(f'{l2}:')
    A('s_mov_b64 exec, -1')
    A(f'{l}:')

def wait_cleared(A):
    lw = A.label('wclr')
    A(f'v_and_b32 v{vT0}, 7, v0'); A(f'v_lshlrev_b32 v{vT0}, 2, v{vT0}'); A(f'v_add_u32 v{vT0}, 32, v{vT0}')
    A(f'{lw}:')
    A(f'global_load_dword v{vT1}, v{vT0}, s[{sDBG}:{sDBG+1}] sc1')
    A('s_waitcnt vmcnt(0)')
    A(f'v_cmp_gt_u32 vcc, 32, v{vT1}')
    timeout_check(A, 'L_fail')
    A(f's_cbranch_vccnz {lw}')

def gate_part(A, opt):
    l = A.label('nogate')
    A(f's_cmp_lg_u32 s{sB}, 1'); A(f's_cbranch_scc1 {l}')
    A(f's_cmp_lg_u32 s{sH}, s{sI}'); A(f's_cbranch_scc1 {l}')
    A(f's_cmp_lg_u32 s{sW}, 0'); A(f's_cbranch_scc1 {l}')
    A(f's_load_dwordx2 s[{sA2}:{sA2+1}], s[0:1], 112')
    acc = 32; gw = 80; xf = 64
    A(f'v_lshrrev_b32 v{vT0}, 5, v0'); A(f'v_lshlrev_b32 v{vT0}, 4, v{vT0}')
    A('s_waitcnt lgkmcnt(0)')
    for half in range(2):
        for q in range(16):
            ks = 16 * half + q
            A(f'global_load_dwordx4 {v(gw + 4*q, 4)}, v{vT0}, s[{sA2}:{sA2+1}] offset:{ks * 32}')
        A('s_waitcnt vmcnt(0)')
        for q in range(16):
            ks = 16 * half + q
            A(f'ds_read_b128 {v(xf,4)}, v{12 + (ks & 3)} offset:{(ks >> 2) * 1024}')
            A('s_waitcnt lgkmcnt(0)')
            c = '0' if ks == 0 else v(acc, 16)
            A(f'v_mfma_f32_32x32x16_bf16 {v(acc,16)}, {v(gw + 4*q,4)}, {v(xf,4)}, {c}')
    A('s_nop 15'); A('s_nop 3')
    A(f'v_mul_f32 v{vT0}, 0xbfb8aa3b, v{acc}')
    A(f'v_exp_f32 v{vT0}, v{vT0}')
    A('s_nop 0')
    A(f'v_add_f32 v{vT0}, 1.0, v{vT0}')
    A(f'v_rcp_f32 v{vT0}, v{vT0}')
    A(f's_lshl_b32 s{sT}, s{sSeg}, 7'); A(f's_add_u32 s{sT}, s{sT}, {WS_G}')
    add64(A, sA2, sWS, f's{sT}')
    A(f'v_lshlrev_b32 v{vT1}, 2, v0')
    A('s_mov_b32 exec_hi, 0')
    A(f'global_store_dword v{vT1}, v{vT0}, s[{sA2}:{sA2+1}]')
    A('s_mov_b64 exec, -1')
    A('s_waitcnt vmcnt(0)')
    A(f'{l}:')


def load_f_weights(A, w, sWq, sWo, nt='nt'):
    vG = [12, 13, 14, 15]; vR = 16
    A(f'v_lshrrev_b32 v{vT0}, 4, v0')
    A(f'v_lshlrev_b32 v{vT1}, 2, v{vT0}')
    A(f'v_and_b32 v10, 15, v0')
    A(f'v_xor_b32 v10, v10, v{vT1}')
    A(f'v_lshlrev_b32 v10, 4, v10')
    A(f'v_add_u32 v{vT0}, {16 * w}, v{vT0}')
    A(f'v_lshl_add_u32 v{vG[0]}, v{vT0}, 13, v10')
    for ii in range(1, 4): A(f'v_add_u32 v{vG[ii]}, {ii * 32768}, v{vG[0]}')
    A(f'v_bfe_u32 v{vT0}, v0, 2, 2')
    A(f'v_xor_b32 v{vT1}, {w}, v{vT0}')
    A(f'v_lshlrev_b32 v{vT1}, 6, v{vT1}')
    A(f'v_lshrrev_b32 v10, 5, v0')
    A(f'v_lshl_add_u32 v17, v10, 3, v{vT0}')
    A(f'v_lshl_add_u32 v{vT1}, v17, 8, v{vT1}')
    A(f'v_bfe_u32 v17, v0, 4, 1')
    A(f'v_lshl_add_u32 v{vT1}, v17, 5, v{vT1}')
    A(f'v_and_b32 v18, 3, v0')
    A(f'v_lshl_add_u32 v11, v18, 3, v{vT1}')
    A(f'v_lshl_add_u32 v19, v10, 2, v{vT0}')
    A(f'v_lshlrev_b32 v19, 10, v19')
    A(f'v_lshl_add_u32 v19, v{vT0}, 6, v19')
    A(f'v_lshl_add_u32 v19, v17, 5, v19')
    A(f'v_lshl_add_u32 v19, v18, 3, v19')
    A(f'v_add_u32 v19, {LW_STG + 256 * w}, v19')
    def dma_q(c):
        add64(A, sA, sWq, c * 64 * 8192)
        for ii in range(4):
            A(f's_mov_b32 m0, {LW_STG + c * 16384 + w * 4096 + ii * 1024}')
            A('s_nop 0')
            A(f'global_load_lds_dwordx4 v{vG[ii]}, s[{sA}:{sA+1}] {nt}')
    def dma_o(c):
        for ii in range(4):
            e = 16 * c + 4 * w + ii
            add64(A, sA, sWo, e * 1024)
            A(f'v_xor_b32 v20, {64 * (e & 3)}, v{vL16}')
            A(f's_mov_b32 m0, {LW_STG + e * 1024}')
            A('s_nop 0')
            A(f'global_load_lds_dwordx4 v20, s[{sA}:{sA+1}] {nt}')
    for c in range(8): dma_q(c)
    for c in range(8):
        A('s_waitcnt vmcnt(28)')
        A('s_barrier')
        A(f'v_add_u32 v{vR}, {LW_STG + c * 16384}, v11')
        for ksl in range(4):
            for jj in range(2):
                A(f'ds_read_b64_tr_b16 {a_((4 * c + ksl) * 4 + 2 * jj, 2)}, v{vR} offset:{ksl * 4096 + jj * 1024}')
        A('s_waitcnt lgkmcnt(0)')
        A('s_barrier')
        dma_o(c)
    for tp in range(4):
        A(f's_waitcnt vmcnt({(3 - tp) * 8})')
        A('s_barrier')
        for ct in range(4):
            A(f'v_xor_b32 v{vR}, {64 * ct}, v19')
            A(f'v_add_u32 v{vR}, {tp * 32768}, v{vR}')
            for z in range(2):
                for jj in range(2):
                    kk = 2 * tp + z
                    A(f'ds_read_b64_tr_b16 {a_(128 + (ct * 8 + kk) * 4 + 2 * jj, 2)}, v{vR} offset:{z * 8192 + jj * 16384}')
        A('s_waitcnt lgkmcnt(0)')
    A('s_barrier')

def f_phase(A, opt):
    vQw, vKw, vOw, vFPs, vFPr, vOut, vKr, vQr, vAB = 10, 11, 16, 17, 18, 19, 20, 21, 22
    rx = [12, 13, 14, 15]
    MSK = 24
    ONE = 172; SEL = 176
    sWq, sWo = 60, 62
    sOut = 26; sFPb = 28; sFLR = 30; sFLM = 32; sFLA = 34; sKM = 36; sC = 48; sPrev = 38; sSlot = 39; sEX32 = 50
    A('L_f:')
    A(f's_mul_i32 s{sT}, s{sB}, 56')
    A(f's_add_u32 s{sA}, s0, s{sT}')
    A(f's_addc_u32 s{sA+1}, s1, 0')
    A(f's_load_dwordx2 s[{sWq}:{sWq+1}], s[{sA}:{sA+1}], 16')
    A(f's_load_dwordx2 s[{sWo}:{sWo+1}], s[{sA}:{sA+1}], 40')
    A(f's_load_dwordx2 s[{sOut}:{sOut+1}], s[0:1], 120')
    A(f's_load_dwordx2 s[{sX}:{sX+1}], s[0:1], 0')
    A('s_waitcnt lgkmcnt(0)')
    A(f's_lshl_b32 s{sT}, s{sH}, 8'); add64(A, sWq, sWq, f's{sT}')
    A(f's_lshl_b32 s{sT}, s{sH}, 17'); add64(A, sWo, sWo, f's{sT}')
    x_setup(A)
    A(f's_mov_b32 s{sSeg}, s{sR}')
    x_dma(A, sSeg, LW_X0)
    lend = A.label('fw'); labs = [A.label(f'fw{w}') for w in range(4)]
    for w in range(1, 4):
        A(f's_cmp_eq_u32 s{sW}, {w}'); A(f's_cbranch_scc1 {labs[w]}')
    for w in range(4):
        A(f'{labs[w]}:')
        load_f_weights(A, w, sWq, sWo, opt.get('wnt', 'nt'))
        if w < 3: A(f's_branch {lend}')
    A(f'{lend}:')
    to = dict(opt); to['tracev'] = ('v30', 'v31')
    trace(A, to, 3)
    n32, g2 = 32, 33
    A(f'v_and_b32 v{n32}, 31, v0'); A(f'v_lshrrev_b32 v{g2}, 5, v0')
    A(f'v_and_b32 v34, 15, v0'); A(f'v_lshrrev_b32 v35, 4, v0')
    A(f'v_lshl_add_u32 v{vT0}, v{g2}, 4, v34'); A(f'v_lshlrev_b32 v{vT0}, 4, v{vT0}')
    A(f'v_bfe_u32 v{vT1}, v0, 4, 1'); A(f'v_lshl_add_u32 v{vT0}, v{vT1}, 10, v{vT0}')
    A(f's_lshl_b32 s{sT}, s{sW}, 11'); A(f's_add_u32 s{sT}, s{sT}, {LW_Q}')
    A(f'v_add_u32 v{vQw}, s{sT}, v{vT0}')
    A(f's_and_b32 s{sT}, s{sW}, 1'); A(f's_lshl_b32 s{sT}, s{sT}, 10'); A(f's_add_u32 s{sT}, s{sT}, {LW_Q}')
    A(f'v_add_u32 v{vQr}, s{sT}, v{vL16}')
    A(f's_lshl_b32 s{sT}, s{sW}, 5'); A(f'v_add_u32 v{vT0}, s{sT}, v34')
    A(f'v_lshlrev_b32 v{vT0}, 5, v{vT0}'); A(f'v_lshl_add_u32 v{vT0}, v35, 3, v{vT0}')
    A(f'v_add_u32 v{vKw}, {LW_K}, v{vT0}')
    A(f'v_bfe_u32 v{vT0}, v0, 5, 1'); A(f'v_lshlrev_b32 v{vT0}, 4, v{vT0}')
    A(f'v_bfe_u32 v{vT1}, v0, 4, 1'); A(f'v_lshl_add_u32 v{vT0}, v{vT1}, 2, v{vT0}')
    A(f'v_bfe_u32 v{vT1}, v0, 2, 2'); A(f'v_add_u32 v{vT0}, v{vT0}, v{vT1}')
    A(f'v_and_b32 v{vT1}, 3, v0'); A(f'v_lshlrev_b32 v{vT1}, 3, v{vT1}')
    A(f'v_lshl_add_u32 v{vT0}, v{vT0}, 5, v{vT1}'); A(f'v_add_u32 v{vKr}, {LW_K}, v{vT0}')
    A(f'v_lshrrev_b32 v{vT0}, 1, v35'); A(f'v_lshlrev_b32 v{vT0}, 10, v{vT0}')
    A(f'v_and_b32 v{vT1}, 1, v35'); A(f'v_lshl_add_u32 v{vT1}, v{vT1}, 5, v34')
    A(f'v_lshl_add_u32 v{vT0}, v{vT1}, 4, v{vT0}')
    A(f's_lshr_b32 s{sT}, s{sW}, 1'); A(f's_lshl_b32 s{sT}, s{sT}, 12')
    A(f's_and_b32 s{sT+1}, s{sW}, 1'); A(f's_lshl_b32 s{sT+1}, s{sT+1}, 8')
    A(f's_add_u32 s{sT}, s{sT}, s{sT+1}'); A(f's_add_u32 s{sT}, s{sT}, {LW_O}')
    A(f'v_add_u32 v{vOw}, s{sT}, v{vT0}')
    A(f's_lshl_b32 s{sT}, s{sW}, 18'); A(f's_lshl_b32 s{sT+1}, s{sH}, 10'); A(f's_add_u32 s{sT}, s{sT}, s{sT+1}')
    A(f'v_add_u32 v{vFPs}, s{sT}, v{vL16}')
    A(f's_lshr_b32 s{sT}, s{sW}, 1'); A(f's_lshl_b32 s{sT}, s{sT}, 5')
    A(f's_and_b32 s{sT+1}, s{sW}, 1'); A(f's_lshl_b32 s{sT+1}, s{sT+1}, 4'); A(f's_add_u32 s{sT}, s{sT}, s{sT+1}')
    A(f'v_add_u32 v{vT0}, s{sT}, v34'); A(f'v_lshlrev_b32 v{vT0}, 4, v{vT0}')
    A(f'v_lshl_add_u32 v{vT0}, v35, 10, v{vT0}')
    A(f's_lshl_b32 s{sT}, s{sH}, 15'); A(f'v_add_u32 v{vFPr}, s{sT}, v{vT0}')
    A(f's_and_b32 s{sT}, s{sW}, 1'); A(f's_lshl_b32 s{sT}, s{sT}, 4'); A(f'v_add_u32 v{vT0}, s{sT}, v34')
    A(f'v_lshlrev_b32 v{vT0}, 10, v{vT0}'); A(f'v_lshl_add_u32 v{vT0}, v35, 4, v{vT0}')
    A(f's_lshl_b32 s{sT}, s{sH}, 5'); A(f's_lshr_b32 s{sT+1}, s{sW}, 1'); A(f's_lshl_b32 s{sT+1}, s{sT+1}, 3')
    A(f's_add_u32 s{sT}, s{sT}, s{sT+1}'); A(f'v_add_u32 v{vOut}, s{sT}, v{vT0}')
    A(f's_lshl_b32 s{sT}, s{sH}, 11'); A(f's_lshl_b32 s{sT+1}, s{sW}, 9'); A(f's_add_u32 s{sT}, s{sT}, s{sT+1}')
    A(f'v_add_u32 v{vAB}, s{sT}, v{vL16}')
    A(f'v_add_u32 v23, 65536, v{vL16}')
    A(f's_and_b32 s{sT}, s{sW}, 1'); A(f's_lshl_b32 s{sT}, s{sT}, 4'); A(f'v_add_u32 v{vT0}, s{sT}, v34')
    A(f'v_lshlrev_b32 v{vT1}, 2, v35')
    A(f'v_mov_b32 v36, 0xf149f2ca')
    for kt in range(2):
        for r in range(4):
            A(f'v_add_u32 v37, {16 * kt + r}, v{vT1}')
            A(f'v_cmp_gt_u32 vcc, v37, v{vT0}')
            A('s_nop 1')
            A(f'v_cndmask_b32 v{MSK + 4*kt + r}, 0, v36, vcc')
    for r in range(4): A(f'v_mov_b32 v{ONE + r}, 0x3f803f80')
    A(f'v_and_b32 v{vT0}, 7, v0'); A(f'v_lshrrev_b32 v{vT1}, 1, v{vT0}')
    A(f'v_and_b32 v{vT0}, 1, v{vT0}'); A(f'v_lshlrev_b32 v{vT0}, 4, v{vT0}')
    A(f'v_mov_b32 v36, 0x3f80'); A(f'v_lshlrev_b32 v{vT0}, v{vT0}, v36')
    for d in range(4):
        A(f'v_cmp_eq_u32 vcc, {d}, v{vT1}'); A('s_nop 1'); A(f'v_cndmask_b32 v{SEL + d}, 0, v{vT0}, vcc')
    A(f's_mov_b32 s{sC}, {hex(f32bits(SM_SCALE_LOG2E))}')
    A(f's_lshl_b32 s{sT}, s{sXCC}, 21'); A(f's_add_u32 s{sT}, s{sT}, {WS_FP}'); add64(A, sFPb, sWS, f's{sT}')
    A(f's_lshl_b32 s{sT}, s{sXCC}, 7'); A(f's_add_u32 s{sT}, s{sT}, {WS_FLR}'); add64(A, sFLR, sWS, f's{sT}')
    A(f's_lshl_b32 s{sT}, s{sB}, 5'); A(f's_add_u32 s{sT}, s{sT}, s{sH}'); A(f's_lshl_b32 s{sT}, s{sT}, 6')
    A(f's_add_u32 s{sT}, s{sT}, {WS_FLM}'); add64(A, sFLM, sWS, f's{sT}')
    A(f's_lshl_b32 s{sT}, s{sR}, 5'); A(f's_add_u32 s{sT}, s{sT}, s{sH}'); A(f's_lshl_b32 s{sT}, s{sT}, 6')
    A(f's_add_u32 s{sT}, s{sT}, {WS_FLA}'); add64(A, sFLA, sWS, f's{sT}')
    A(f's_cmp_eq_u32 s{sR}, 0'); A(f's_cselect_b32 s{sN}, 22, 21')
    A(f's_mov_b32 s{sI}, 0'); A(f's_mov_b32 s{sXL}, {LW_X0}')

    NF = 10
    def fst(i):
        if opt.get('fstamps'): A(f's_memtime s[{64 + 2*i}:{65 + 2*i}]')
    def fst_acc():
        if opt.get('fstamps'):
            A('s_waitcnt lgkmcnt(0)')
            for i in range(NF - 1):
                A(f's_sub_u32 s{sT}, s{64 + 2*(i+1)}, s{64 + 2*i}'); A(f's_add_u32 s{84 + i}, s{84 + i}, s{sT}')
    if opt.get('fstamps'):
        for i in range(NF): A(f's_mov_b32 s{84 + i}, 0')
    slow = []
    vF0, vF1 = 189, 190
    vFA = 191
    vKVr = 3
    A(f'v_and_b32 v{vFA}, 31, v0'); A(f'v_lshlrev_b32 v{vFA}, 2, v{vFA}')
    RL = 192; RES = 180; AV = 184; GV = 188
    sAB = 40; sOutP = 42; sKVn = 44; sKVL = 46; sRed = 64 if not opt.get('fstamps') else 94
    class Vm:
        def __init__(self): self.q = []; self.done = -1
        def op(self, tag, ins): A(ins); self.q.append(tag)
        def mk(self, tag, ins): return lambda: self.op(tag, ins)
        def need(self, *tags):
            last = max(len(self.q) - 1 - self.q[::-1].index(t) for t in tags)
            if last > self.done:
                n = len(self.q) - 1 - last; assert n <= 63
                A(f's_waitcnt vmcnt({n})'); self.done = last
        def drain(self): A('s_waitcnt vmcnt(0)'); self.done = len(self.q) - 1
    def kv_setup(seg_sgpr, ldsbase_sgpr):
        A(f's_lshl_b32 s{sT}, s{sB}, 6'); A(f's_add_u32 s{sT}, s{sT}, s{seg_sgpr}')
        A(f's_lshl_b32 s{sT}, s{sT}, 5'); A(f's_add_u32 s{sT}, s{sT}, s{sH}')
        A(f's_lshl_b32 s{sT}, s{sT}, 14'); A(f's_lshl_b32 s{sT+1}, s{sW}, 12'); A(f's_add_u32 s{sT}, s{sT}, s{sT+1}')
        add64(A, sKVn, sWS, f's{sT}')
        A(f's_add_u32 s{sKVL+1}, s{sT+1}, s{ldsbase_sgpr}')
    def check_flr(need_sgpr):
        ls = A.label('flrslow'); lb = A.label('flrok')
        A(f'v_cmp_gt_u32 vcc, s{need_sgpr}, v{vF1}')
        A(f's_cbranch_vccnz {ls}')
        A(f'{lb}:')
        slow.append(('flr', ls, lb, need_sgpr))
    def check_flm(need_sgpr):
        ls = A.label('flmslow'); lb = A.label('flmok')
        A(f'v_readfirstlane_b32 s{sT+5}, v{vF0}')
        A('s_nop 0')
        A(f's_cmp_lt_u32 s{sT+5}, s{need_sgpr}')
        A(f's_cbranch_scc1 {ls}')
        A(f'{lb}:')
        slow.append(('flm', ls, lb, need_sgpr))
    def a_store_ins(): return f'global_store_dwordx4 v{vAB}, {v(RES,4)}, s[{sAB}:{sAB+1}] sc1'
    def b_finish(skip0):
        lp = A.label('await'); lok = A.label('aok')
        A('s_mov_b32 exec_hi, 0')
        if skip0:
            A(f's_cmp_eq_u32 s{sI}, 0'); A(f's_cbranch_scc1 {lok}')
        A(f'{lp}:')
        A(f'v_cmp_eq_u32 vcc, -1, v{AV}')
        A(f's_cbranch_vccz {lok}')
        A(f'global_load_dwordx4 {v(AV,4)}, v{vAB}, s[{sAB}:{sAB+1}] sc1')
        A('s_waitcnt vmcnt(0)')
        timeout_check(A, 'L_fail')
        A(f's_branch {lp}')
        A(f'{lok}:')
        for r in range(4):
            A(f'v_sub_f32 v{AV + r}, v{AV + r}, v{RES + r}')
            A(f'v_fma_f32 v{AV + r}, v{GV}, v{AV + r}, v{RES + r}')
        A(f'v_cvt_pk_bf16_f32 v{AV}, v{AV}, v{AV+1}'); A(f'v_cvt_pk_bf16_f32 v{AV+1}, v{AV+2}, v{AV+3}')
        A(f'global_store_dwordx2 v{vOut}, {v(AV,2)}, s[{sOutP}:{sOutP+1}]')
        A('s_mov_b64 exec, -1')
    def prev_bases():
        A(f's_lshl_b32 s{sT}, s{sPrev}, 16'); A(f's_add_u32 s{sT}, s{sT}, {WS_AB}')
        A(f's_cmp_eq_u32 s{sI}, 0'); A(f's_cselect_b32 s{sT}, {WS_FDUM}, s{sT}')
        add64(A, sAB, sWS, f's{sT}')
        A(f's_lshl_b32 s{sT}, s{sPrev}, 15'); add64(A, sOutP, sOut, f's{sT}')
        l = A.label('od'); A(f's_cmp_lg_u32 s{sI}, 0'); A(f's_cbranch_scc1 {l}')
        add64(A, sOutP, sWS, WS_FDUM + 0x40000)
        A(f'{l}:')
    def g_base():
        A(f's_lshl_b32 s{sT}, s{sPrev}, 7'); A(f's_and_b32 s{sT+1}, s{sW}, 1'); A(f's_lshl_b32 s{sT+1}, s{sT+1}, 6')
        A(f's_add_u32 s{sT}, s{sT}, s{sT+1}'); A(f's_add_u32 s{sT}, s{sT}, {WS_G}'); add64(A, sA2, sWS, f's{sT}')
        A(f'v_and_b32 v{vT0}, 15, v0'); A(f'v_lshlrev_b32 v{vT0}, 2, v{vT0}')
    A(f's_mov_b32 s{sKVL}, {LW_KV0}')
    kv_setup(sSeg, sKVL)
    A(f's_mov_b32 m0, s{sKVL+1}'); A('s_nop 0')
    for i in range(4): A(f'global_load_lds_dwordx4 v{vL16}, s[{sKVn}:{sKVn+1}] offset:{1024 * i} sc1')
    A(f's_mov_b32 s{sPrev}, 0')

    def f_loop(side):
        V = Vm(); L = Lds(A)
        A('.p2align 6')
        A(f'L_f_loop{side}:')
        fst(0)
        A('s_waitcnt vmcnt(0)')
        A('s_barrier')
        fst(1)
        V.op('flr', f'global_load_dword v{vF1}, v{vFA}, s[{sFLR}:{sFLR+1}] sc1')
        A('s_mov_b64 exec, 1')
        V.op('flm', f'global_load_dword v{vF0}, v{vL16}, s[{sFLM}:{sFLM+1}] sc1')
        A('s_mov_b64 exec, -1')
        for k in range(4): A(f'v_add_u32 v{rx[k]}, s{sXL}, v{vXR[k]}')
        A(f'v_add_u32 v{vKVr}, s{sKVL}, v{vL16}')
        accQ = 32; xf = [64, 68, 72, 76]
        def xr(ks): return f'ds_read_b128 {v(xf[ks & 3], 4)}, v{rx[ks & 3]} offset:{(ks >> 2) * 1024}'
        for ks in range(3): A(xr(ks))
        A(f's_lshl_b32 s{sT}, s{sB}, 6'); A(f's_add_u32 s{sT}, s{sT}, s{sSeg}')
        A(f's_lshl_b32 s{sT}, s{sT}, 5'); A(f's_add_u32 s{sT}, s{sT}, s{sH}')
        A(f's_lshl_b32 s{sT+1}, s{sT}, 13'); A(f's_add_u32 s{sT+1}, s{sT+1}, {WS_KM}'); add64(A, sKM, sWS, f's{sT+1}')
        A(f's_add_u32 s{sT+2}, s{sSeg}, 3'); A(f's_min_u32 s{sT+2}, s{sT+2}, 63')
        A(f's_lshl_b32 s{sT}, s{sT+2}, 15'); add64(A, sA, sX, f's{sT}')
        A(f's_xor_b32 s{sT+3}, s{sXL}, {LW_X0 ^ LW_X1}')
        A(f's_lshl_b32 s{sT}, s{sW}, 13'); A(f's_add_u32 s{sT+3}, s{sT+3}, s{sT}')
        A(f's_xor_b32 s{sKVL}, s{sKVL}, {LW_KV0 ^ LW_KV1}')
        kv_setup(sT + 2, sKVL)
        A(f's_sub_u32 s{sT}, s{sI}, 1'); A(f's_and_b32 s{sT}, s{sT}, 1'); A(f's_lshl_b32 s{sT}, s{sT}, 20')
        add64(A, sRed, sFPb, f's{sT}')
        prev_bases()
        fill = {}
        def put(s_, *x): fill.setdefault(s_, []).extend(x)
        for kc in range(8):
            put(1 + kc, (lambda kc=kc: (A(f's_add_u32 m0, s{sT+3}, {kc * 1024 - kc * 128}'), A('s_nop 0'),
                                        V.op(('x', kc), f'global_load_lds_dwordx4 v{vXG}, s[{sA}:{sA+1}] offset:{kc * 128}'))))
        put(9, lambda: (A(f's_mov_b32 m0, s{sKVL+1}'), A('s_nop 0')))
        for i in range(4): put(9 + i, V.mk(('kv', i), f'global_load_lds_dwordx4 v{vL16}, s[{sKVn}:{sKVn+1}] offset:{1024 * i} sc1'))
        put(13, lambda: (V.need('flr'), check_flr(sI)))
        for i8 in range(8):
            put(14 + 2 * i8, V.mk(('red', i8), f'global_load_dwordx4 {v(RL + 4*i8, 4)}, v{vFPr}, s[{sRed}:{sRed+1}] sc1'))
            if i8 < 7: put(14 + 2 * i8, f's_add_u32 s{sRed}, s{sRed}, 4096', f's_addc_u32 s{sRed+1}, s{sRed+1}, 0')
        for ks in range(32):
            A(f's_waitcnt lgkmcnt({min(2, 31 - ks)})')
            c = '0' if ks == 0 else v(accQ, 16)
            A(f'v_mfma_f32_32x32x16_bf16 {v(accQ,16)}, {a_(4*ks,4)}, {v(xf[ks & 3],4)}, {c}')
            if ks + 3 < 32: A(xr(ks + 3))
            for x in fill.get(ks, []):
                if callable(x): x()
                else: A(x)
        fst(2)
        A(f's_add_u32 s{sT+4}, s{sSeg}, 1')
        V.need('flm')
        if not opt.get('nowaitm'): check_flm(sT + 4)
        A(f's_lshl_b32 s{sT}, s{sW}, 10'); add64(A, sA, sKM, f's{sT}')
        V.op('kmk', f'global_load_dwordx2 v[128:129], v{vL16}, s[{sA}:{sA+1}] sc1')
        A(f's_lshr_b32 s{sT}, s{sW}, 1'); A(f's_lshl_b32 s{sT}, s{sT}, 11'); add64(A, sA, sKM, f's{sT}')
        V.op('kmv0', f'global_load_dwordx2 v[130:131], v{vL16}, s[{sA}:{sA+1}] offset:8 sc1')
        V.op('kmv1', f'global_load_dwordx2 v[132:133], v{vL16}, s[{sA}:{sA+1}] offset:1032 sc1')
        for i in range(8): A(f'v_cvt_pk_bf16_f32 v{48 + i}, v{accQ + 2*i}, v{accQ + 2*i + 1}')
        A(f'ds_write_b128 v{vQw}, v[48:51]')
        A(f'ds_write_b128 v{vQw}, v[52:55] offset:512')
        fst(3)
        for i8 in range(8):
            V.need(('red', i8))
            c = '0' if i8 == 0 else v(RES, 4)
            A(f'v_mfma_f32_16x16x32_bf16 {v(RES,4)}, {v(SEL,4)}, {v(RL + 4*i8,4)}, {c}')
        KX = 80; VX = 112
        for i in range(8): A(f'ds_read_b128 {v(KX + 4*i,4)}, v{vKVr} offset:{1024 * i}')
        A(f's_lshr_b32 s{sT}, s{sW}, 1'); A(f's_lshl_b32 s{sT}, s{sT}, 12'); A(f's_add_u32 s{sT}, s{sT}, 8192')
        A(f'v_add_u32 v{vT0}, s{sT}, v{vKVr}')
        for f in range(4): A(f'ds_read_b128 {v(VX + 4*f,4)}, v{vT0} offset:{1024 * f}')
        if side == 'A':
            A(f'v_min_u32 v{RES}, -2, v{RES}')
            A('s_mov_b32 exec_hi, 0')
            V.op('ast', a_store_ins())
            A('s_mov_b64 exec, -1')
        fst(4)
        V.need('kmk')
        A(f'ds_write_b32 v{vKw}, v128')
        A(f'ds_write_b32 v{vKw}, v129 offset:512')
        A('s_waitcnt lgkmcnt(0)')
        A('s_barrier')
        qf = [64, 68, 72, 76]; kf = [136, 140, 144, 148]
        for ks in range(4): A(f'ds_read_b128 {v(qf[ks],4)}, v{vQr} offset:{ks * 2048}')
        for ks in range(4):
            for jj in range(2):
                A(f'ds_read_b64_tr_b16 {v(kf[ks] + 2*jj, 2)}, v{vKr} offset:{ks * 1024 + jj * 256}')
        V.need('kmv1')
        A('s_waitcnt lgkmcnt(8)')
        fst(5)
        S = [32, 36]; Sm = 40
        for ks in range(4):
            for kt in range(2):
                c = v(MSK + 4*kt, 4) if ks == 0 else v(S[kt], 4)
                A(f'v_mfma_f32_16x16x32_bf16 {v(S[kt],4)}, {v(KX + 4*(4*kt + ks),4)}, {v(qf[ks],4)}, {c}')
        A('s_waitcnt lgkmcnt(0)')
        for ks in range(4):
            c = '0' if ks == 0 else v(Sm, 4)
            A(f'v_mfma_f32_16x16x32_bf16 {v(Sm,4)}, {v(kf[ks],4)}, {v(qf[ks],4)}, {c}')
        if side == 'B':
            g_base()
            A('s_mov_b32 exec_hi, 0')
            V.op('ald', f'global_load_dwordx4 {v(AV,4)}, v{vAB}, s[{sAB}:{sAB+1}] sc1')
            V.op('gld', f'global_load_dword v{GV}, v{vT0}, s[{sA2}:{sA2+1}] sc1')
            A('s_mov_b64 exec, -1')
        A('s_nop 7')
        sx = [S[0] + r for r in range(4)] + [S[1] + r for r in range(4)]
        A(f'v_max3_f32 v{vT0}, v{sx[0]}, v{sx[1]}, v{sx[2]}')
        A(f'v_max3_f32 v{vT1}, v{sx[3]}, v{sx[4]}, v{sx[5]}')
        A(f'v_max3_f32 v{vT0}, v{vT0}, v{sx[6]}, v{sx[7]}')
        A(f'v_max3_f32 v{vT0}, v{vT0}, v{Sm}, v{Sm+1}')
        A(f'v_max_f32 v{vT0}, v{vT0}, v{vT1}')
        A(f'v_mov_b32 v{vT1}, v{vT0}'); A('s_nop 1')
        A(f'v_permlane16_swap_b32 v{vT0}, v{vT1}')
        A(f'v_max_f32 v{vT0}, v{vT0}, v{vT1}')
        A(f'v_mov_b32 v{vT1}, v{vT0}'); A('s_nop 1')
        A(f'v_permlane32_swap_b32 v{vT0}, v{vT1}')
        A(f'v_max_f32 v{vT0}, v{vT0}, v{vT1}')
        A(f'v_mul_f32 v{vT0}, s{sC}, v{vT0}')
        for r in sx + [Sm, Sm + 1]: A(f'v_fma_f32 v{r}, v{r}, s{sC}, -v{vT0}')
        for r in sx + [Sm, Sm + 1]: A(f'v_exp_f32 v{r}, v{r}')
        Px = 44
        A('v_mov_b32 v49, 0'); A('v_mov_b32 v50, 0')
        for i in range(4): A(f'v_cvt_pk_bf16_f32 v{Px + i}, v{sx[2*i]}, v{sx[2*i+1]}')
        A(f'v_cvt_pk_bf16_f32 v48, v{Sm}, v{Sm+1}'); A(f'v_cvt_pk_bf16_f32 v51, v{Sm}, v{Sm+1}')
        O = [152 + 4*f for f in range(4)]; lacc = 168
        A('s_nop 1')
        A(f'v_mfma_f32_16x16x32_bf16 {v(lacc,4)}, {v(ONE,4)}, {v(Px,4)}, 0')
        for f in range(4): A(f'v_mfma_f32_16x16x32_bf16 {v(O[f],4)}, {v(VX + 4*f,4)}, {v(Px,4)}, 0')
        A(f'v_mfma_f32_16x16x16_bf16 {v(lacc,4)}, {v(ONE,2)}, v[48:49], {v(lacc,4)}')
        for f in range(4):
            bop = 'v[48:49]' if f % 2 == 0 else 'v[50:51]'
            A(f'v_mfma_f32_16x16x16_bf16 {v(O[f],4)}, {v(130 + 2*(f >> 1),2)}, {bop}, {v(O[f],4)}')
        A('s_nop 7'); A('s_nop 1')
        A(f'v_rcp_f32 v{vT0}, v{lacc}'); A('s_nop 0')
        for r in range(16): A(f'v_mul_f32 v{152 + r}, v{152 + r}, v{vT0}')
        for r in range(8): A(f'v_cvt_pk_bf16_f32 v{152 + r}, v{152 + 2*r}, v{153 + 2*r}')
        A(f'ds_write_b128 v{vOw}, v[152:155]')
        A(f'ds_write_b128 v{vOw}, v[156:159] offset:2048')
        A(f's_and_b32 s{sT}, s{sI}, 1'); A(f's_lshl_b32 s{sT}, s{sT}, 20'); add64(A, sA, sFPb, f's{sT}')
        A('s_waitcnt lgkmcnt(0)')
        A('s_barrier')
        fst(6)
        of = [64 + 4*k for k in range(8)]
        for kk in range(8): A(f'ds_read_b128 {v(of[kk],4)}, v23 offset:{LW_O - 65536 + kk * 1024}')
        acc = [192 + 16*ct for ct in range(4)]
        def epi(ct):
            o = 32 + 8 * (ct & 1)
            r = [f'v_cvt_pk_bf16_f32 v{o + i}, v{acc[ct] + 2*i}, v{acc[ct] + 2*i + 1}' for i in range(8)]
            st = []
            for qq in range(2):
                st.append([lambda qq=qq, o=o, ct=ct: V.op(('fp', ct, qq), f'global_store_dwordx4 v{vFPs}, {v(o + 4*qq, 4)}, s[{sA}:{sA+1}]'),
                           f's_add_u32 s{sA}, s{sA}, 32768', f's_addc_u32 s{sA+1}, s{sA+1}, 0'])
            return r[:4] + st[0] + r[4:] + st[1]
        todo = []
        for ct in range(4):
            for kk in range(8):
                if ct == 0: A(f's_waitcnt lgkmcnt({7 - kk})')
                c = '0' if kk == 0 else v(acc[ct], 16)
                A(f'v_mfma_f32_32x32x16_bf16 {v(acc[ct],16)}, {a_(128 + (ct*8 + kk)*4,4)}, {v(of[kk],4)}, {c}')
                if ct > 0 and kk == 2: todo += epi(ct - 1)
                for _ in range(3):
                    if todo:
                        x = todo.pop(0)
                        if callable(x): x()
                        else: A(x)
        for x in todo:
            if callable(x): x()
            else: A(x)
        fst(7)
        A('s_nop 15'); A('s_nop 3')
        for x in epi(3):
            if callable(x): x()
            else: A(x)
        fst(8)
        if side == 'B':
            V.need('gld')
            b_finish(True)
        A('s_waitcnt vmcnt(0)')
        A('s_barrier')
        fst(9)
        fst_acc()
        l = A.label('noflr')
        A(f's_cmp_lg_u32 s{sW}, 0'); A(f's_cbranch_scc1 {l}')
        A(f's_add_u32 s{sT}, s{sI}, 1')
        A(f'v_mov_b32 v{vT0}, s{sT}'); A(f's_lshl_b32 s{sT}, s{sH}, 2'); A(f'v_mov_b32 v{vT1}, s{sT}')
        A('s_mov_b64 exec, 1')
        A(f'global_store_dword v{vT1}, v{vT0}, s[{sFLR}:{sFLR+1}]')
        A('s_mov_b64 exec, -1')
        A(f'{l}:')
        to2 = dict(opt); to2['tracev'] = ('v8', 'v9')
        trace(A, to2, 8, dyn=sI)
        A(f's_mov_b32 s{sPrev}, s{sSeg}')
        A(f's_add_u32 s{sSeg}, s{sSeg}, 3')
        A(f's_xor_b32 s{sXL}, s{sXL}, {LW_X0 ^ LW_X1}')
        A(f's_add_u32 s{sI}, s{sI}, 1')
        A(f's_cmp_lt_u32 s{sI}, s{sN}')
        A(f's_cbranch_scc1 L_f_loop{side}')
        lp = A.label('lastflr')
        A(f'{lp}:')
        A(f'global_load_dword v{vF1}, v{vFA}, s[{sFLR}:{sFLR+1}] sc1')
        A('s_waitcnt vmcnt(0)')
        A(f'v_cmp_gt_u32 vcc, s{sI}, v{vF1}')
        timeout_check(A, 'L_fail')
        A(f's_cbranch_vccnz {lp}')
        A(f's_sub_u32 s{sT}, s{sI}, 1'); A(f's_and_b32 s{sT}, s{sT}, 1'); A(f's_lshl_b32 s{sT}, s{sT}, 20')
        add64(A, sRed, sFPb, f's{sT}')
        for i8 in range(8):
            A(f'global_load_dwordx4 {v(RL + 4*i8, 4)}, v{vFPr}, s[{sRed}:{sRed+1}] sc1')
            if i8 < 7: add64(A, sRed, sRed, 4096)
        prev_bases()
        if side == 'B':
            g_base()
            A('s_mov_b32 exec_hi, 0')
            A(f'global_load_dwordx4 {v(AV,4)}, v{vAB}, s[{sAB}:{sAB+1}] sc1')
            A(f'global_load_dword v{GV}, v{vT0}, s[{sA2}:{sA2+1}] sc1')
            A('s_mov_b64 exec, -1')
        y = 2 if side == 'B' else 0
        for i8 in range(8):
            A(f's_waitcnt vmcnt({y + 7 - i8})')
            c = '0' if i8 == 0 else v(RES, 4)
            A(f'v_mfma_f32_16x16x32_bf16 {v(RES,4)}, {v(SEL,4)}, {v(RL + 4*i8,4)}, {c}')
        A('s_nop 7'); A('s_nop 1')
        if side == 'A':
            A(f'v_min_u32 v{RES}, -2, v{RES}')
            A('s_mov_b32 exec_hi, 0')
            A(a_store_ins())
            A('s_mov_b64 exec, -1')
        else:
            A('s_waitcnt vmcnt(0)')
            b_finish(False)
        A('s_waitcnt vmcnt(0)')
        to2 = dict(opt); to2['tracev'] = ('v8', 'v9')
        trace(A, to2, 4)
        if opt.get('fstamps'):
            A(f's_lshl_b32 s{sT}, s{sXCC}, 5'); A(f's_add_u32 s{sT}, s{sT}, s{sH}'); A(f's_lshl_b32 s{sT}, s{sT}, 2'); A(f's_add_u32 s{sT}, s{sT}, s{sW}')
            A(f's_lshl_b32 s{sT}, s{sT}, 6'); A(f's_add_u32 s{sT}, s{sT}, 0x06900000')
            A(f'v_mov_b32 v8, s{sT}'); A('s_mov_b64 exec, 1')
            for i in range(NF):
                A(f'v_mov_b32 v9, s{84 + i}'); A(f'global_store_dword v8, v9, s[{sWS}:{sWS+1}] offset:{4*i}')
            A('s_waitcnt vmcnt(0)')
        A('s_endpgm')
    A(f's_cmp_eq_u32 s{sB}, 1'); A('s_cbranch_scc1 L_f_sideB')
    f_loop('A')
    A('L_f_sideB:')
    f_loop('B')
    for kind, ls, lb, need in slow:
        A(f'{ls}:')
        if kind == 'flr':
            A(f'global_load_dword v{vF1}, v{vFA}, s[{sFLR}:{sFLR+1}] sc1')
            A('s_waitcnt vmcnt(0)')
            A(f'v_cmp_gt_u32 vcc, s{need}, v{vF1}')
            timeout_check(A, 'L_fail')
            A(f's_cbranch_vccnz {ls}')
        else:
            A('s_mov_b64 exec, 1')
            A(f'global_load_dword v{vF0}, v{vL16}, s[{sFLM}:{sFLM+1}] sc1')
            A('s_mov_b64 exec, -1')
            A('s_waitcnt vmcnt(0)')
            A(f'v_readfirstlane_b32 s{sT+5}, v{vF0}')
            timeout_check(A, 'L_fail')
            A(f's_cmp_lt_u32 s{sT+5}, s{need}')
            A(f's_cbranch_scc1 {ls}')
        A(f's_branch {lb}')
```

```python
import sys, json
from asmlib import *
import chain as CH
import worker as WK
from chain import sWS, sDBG, sW, sH, sB, sTO, sT

NAME = 'gated_mix__memory_aug_recurrent_mem_tr__memory_aug_recurrent_mem_tr__prompt'
HEADER = open('cdna_kernels/' + NAME + '.s.ref').read().split('; Override launch geometry')[0]

def prologue(A, opt):
    A('s_cmp_ge_u32 s2, 256')
    A('s_cbranch_scc1 L_exit')
    if opt.get('cpf', 1):
        A('s_getpc_b64 s[20:21]')
        A('L_pc0:')
        A('s_lshr_b32 s22, s2, 3'); A('s_and_b32 s22, s22, 31'); A('s_lshl_b32 s22, s22, 12')
        A('v_lshlrev_b32 v10, 4, v0')
        A('v_add_u32 v10, s22, v10')
        A('v_min_u32 v10, L_code_end-L_pc0-16, v10')
        A('global_load_dwordx4 v[248:251], v10, s[20:21]')
    A(f's_load_dwordx2 s[{sWS}:{sWS+1}], s[0:1], 136')
    A(f's_load_dwordx2 s[{sDBG}:{sDBG+1}], s[0:1], 128')
    A('s_getreg_b32 s13, hwreg(HW_REG_XCC_ID, 0, 4)')
    A('v_lshrrev_b32 v1, 6, v0')
    A('v_and_b32 v0, 63, v0')
    A(f's_mov_b32 s{sTO}, 0x00200000')
    A(f'v_readfirstlane_b32 s{sW}, v1')
    A('s_and_b32 s13, s13, 7')
    A('s_waitcnt lgkmcnt(0)')
    l = A.label('notick')
    A(f's_cmp_lg_u32 s{sW}, 0'); A(f's_cbranch_scc1 {l}')
    A('s_lshl_b32 s14, s13, 2')
    A('v_mov_b32 v2, s14')
    A('v_mov_b32 v3, 1')
    A('s_mov_b64 exec, 1')
    A(f'global_atomic_add v4, v2, v3, s[{sDBG}:{sDBG+1}] sc0 sc1')
    A('s_waitcnt vmcnt(0)')
    A('v_mov_b32 v2, 0')
    A('ds_write_b32 v2, v4')
    A('s_waitcnt lgkmcnt(0)')
    A('s_mov_b64 exec, -1')
    A(f'{l}:')
    A('s_barrier')
    A('v_mov_b32 v2, 0')
    A('ds_read_b32 v4, v2')
    A('s_waitcnt lgkmcnt(0)')
    A(f'v_readfirstlane_b32 s{sH}, v4')
    A('s_barrier')
    A(f's_cmp_ge_u32 s{sH}, 32')
    A('s_cbranch_scc1 L_exit')
    A(f's_mov_b32 s{sB}, s13')
    if opt.get('trace'):
        A(f's_lshl_b32 s100, s13, 5'); A(f's_add_u32 s100, s100, s{sH}'); A('s_lshl_b32 s100, s100, 8')
        A(f's_add_u32 s100, s100, {TRACE_BASE}')
        o2 = dict(opt); o2['tracev'] = ('v30', 'v31')
        trace(A, o2, 0)

def worker_ids(A):
    A('s_mov_b32 s3, s13')
    A('s_sub_u32 s13, s13, 2')
    A(f's_and_b32 s{sB}, s13, 1')
    A('s_lshr_b32 s13, s13, 1')

def footer(A):
    A('L_fail:')
    A('v_mov_b32 v2, 252')
    A('v_mov_b32 v3, 0xdead')
    A('s_mov_b64 exec, 1')
    A(f'global_store_dword v2, v3, s[{sDBG}:{sDBG+1}] sc1')
    A('s_waitcnt vmcnt(0)')
    A('L_exit:')
    A('s_endpgm')
    A('L_code_end:')

def build(opt):
    A = Asm()
    kname = NAME + '_kernel'
    A.lines.append(HEADER.rstrip('\n'))
    A.lines.append('; Override launch geometry by editing the next line (harness parses it).')
    A.lines.append('; @launch grid=(256,1,1) block=(256,1,1) lds=163840')
    A('.amdgcn_target "amdgcn-amd-amdhsa--gfx950"')
    A('.text')
    A(f'.globl {kname}')
    A('.p2align 8')
    A(f'.type {kname},@function')
    A(f'{kname}:')
    prologue(A, opt)
    if opt['mode'] == 'chain_test':
        A('s_cmp_lt_u32 s13, 2')
        A('s_cbranch_scc0 L_exit')
        CH.chain_role(A, opt)
    if opt['mode'] == 'p1_test':
        A('s_cmp_lt_u32 s13, 2')
        A('s_cbranch_scc1 L_exit')
        worker_ids(A)
        WK.p1_phase(A, opt)
        A('s_endpgm')
    if opt['mode'] == 'full':
        opt = dict(opt); opt['integ'] = 1
        A('s_cmp_lt_u32 s13, 2')
        A('s_cbranch_scc0 L_worker')
        CH.chain_role(A, opt)
        A('L_worker:')
        worker_ids(A)
        WK.worker_clear(A)
        WK.p1_phase(A, opt)
        WK.wait_cleared(A)
        WK.f_phase(A, opt)
    if opt['mode'] == 'f_test':
        A('s_cmp_lt_u32 s13, 2')
        A('s_cbranch_scc1 L_exit')
        worker_ids(A)
        WK.f_phase(A, opt)
    footer(A)
    A('.section .rodata,"a"')
    A('.p2align 6')
    A(f'.amdhsa_kernel {kname}')
    A('.amdhsa_next_free_vgpr 512')
    A('.amdhsa_next_free_sgpr 102')
    A('.amdhsa_accum_offset 256')
    A('.amdhsa_group_segment_fixed_size 0')
    A('.amdhsa_kernarg_size 144')
    A('.amdhsa_user_sgpr_count 2')
    A('.amdhsa_user_sgpr_kernarg_segment_ptr 1')
    A('.amdhsa_system_sgpr_workgroup_id_x 1')
    A('.amdhsa_float_denorm_mode_32 3')
    A('.end_amdhsa_kernel')
    return A.text()

if __name__ == '__main__':
    out = sys.argv[1]
    opt = json.loads(sys.argv[2])
    open(out, 'w').write(build(opt))
```
